```python
import torch

def _softmax(x, axis=-1):
    return torch.softmax(x, dim=axis)
def _gelu(x):
    return torch.nn.functional.gelu(x, approximate="tanh")
def _silu(x):
    return torch.nn.functional.silu(x)
def _sigmoid(x):
    return torch.sigmoid(x)
def _layernorm(x, axis=-1, eps=1e-5):
    m = x.mean(dim=axis, keepdim=True)
    v = x.var(dim=axis, keepdim=True, unbiased=False)
    return (x - m) / torch.sqrt(v + eps)
def _scatter_add(tgt, idx, src, axis=0):
    return tgt.clone().index_add_(axis, idx, src)
def _segment_sum(src, seg, n):
    out = torch.zeros((n,) + src.shape[1:], dtype=src.dtype)
    return out.index_add_(0, seg, src)
def _pad(x, pw):
    flat = tuple(v for pair in reversed(pw) for v in pair)
    return torch.nn.functional.pad(x, flat)

kernel_name = 'concat_heads__gqa_block_cached__gqa_block_cached__near_ridge'

def setup_inputs():

    _w = (lambda a: (lambda t: t.to(torch.bfloat16) if t.is_floating_point() else t)(torch.as_tensor(a)))
    def _A_setup():
        B, Sq, D = 32, 32, 448
        Hq, Hkv, Sk, Dh = 16, 8, 32, 256
        assert Hq % Hkv == 0, (Hq, Hkv)
        return {
            "x": _w((lambda *s: torch.randn(*s, dtype=torch.bfloat16) * 0.8)(B, Sq, D)),
            "k_cache": _w((lambda *s: torch.randn(*s, dtype=torch.bfloat16) * 0.8)(B, Hkv, Sk, Dh)),
            "v_cache": _w((lambda *s: torch.randn(*s, dtype=torch.bfloat16) * 0.05)(B, Hkv, Sk, Dh)),
            "wq": _w((lambda *s: torch.randn(*s, dtype=torch.bfloat16) * 0.8)(D, Hq * Dh) * (D ** -0.5)),
            "wo": _w((lambda *s: torch.randn(*s, dtype=torch.bfloat16) * 0.05)(Hq * Dh, D) * ((Hq * Dh) ** -0.5)),
        }
    _A_in = _A_setup()

    def _B_setup():
        B, Sq, D = 32, 32, 448
        Hq, Hkv, Sk, Dh = 16, 8, 32, 256
        assert Hq % Hkv == 0, (Hq, Hkv)
        return {
            "x": _w((lambda *s: torch.randn(*s, dtype=torch.bfloat16) * 0.8)(B, Sq, D)),
            "k_cache": _w((lambda *s: torch.randn(*s, dtype=torch.bfloat16) * 0.8)(B, Hkv, Sk, Dh)),
            "v_cache": _w((lambda *s: torch.randn(*s, dtype=torch.bfloat16) * 0.05)(B, Hkv, Sk, Dh)),
            "wq": _w((lambda *s: torch.randn(*s, dtype=torch.bfloat16) * 0.8)(D, Hq * Dh) * (D ** -0.5)),
            "wo": _w((lambda *s: torch.randn(*s, dtype=torch.bfloat16) * 0.05)(Hq * Dh, D) * ((Hq * Dh) ** -0.5)),
        }
    _B_in = _B_setup()

    return {
        "A_x": _A_in["x"],
        "A_k_cache": _A_in["k_cache"],
        "A_v_cache": _A_in["v_cache"],
        "A_wq": _A_in["wq"],
        "A_wo": _A_in["wo"],
        "B_x": _B_in["x"],
        "B_k_cache": _B_in["k_cache"],
        "B_v_cache": _B_in["v_cache"],
        "B_wq": _B_in["wq"],
        "B_wo": _B_in["wo"],
    }

def reference(A_x, A_k_cache, A_v_cache, A_wq, A_wo, B_x, B_k_cache, B_v_cache, B_wq, B_wo):
    def _A_ref(x, k_cache, v_cache, wq, wo):
        B, Sq, D = x.shape
        Hq, Dh = 16, 256
        Hkv = k_cache.shape[1]
        rep = Hq // Hkv
        q = (lambda x, *d: x.permute(*d))((x @ wq).reshape(B, Sq, Hq, Dh), 0, 2, 1, 3)
        k = (lambda x, n, axis: torch.repeat_interleave(x, n, dim=axis))(k_cache, rep, axis=1)
        v = (lambda x, n, axis: torch.repeat_interleave(x, n, dim=axis))(v_cache, rep, axis=1)
        scores = torch.einsum("bhqd,bhkd->bhqk", q, k) * (Dh ** -0.5)
        p = _softmax(scores, axis=-1)
        o = torch.einsum("bhqk,bhkd->bhqd", p, v)
        return (lambda x, *d: x.permute(*d))(o, 0, 2, 1, 3).reshape(B, Sq, Hq * Dh) @ wo

    def _B_ref(x, k_cache, v_cache, wq, wo):
        B, Sq, D = x.shape
        Hq, Dh = 16, 256
        Hkv = k_cache.shape[1]
        rep = Hq // Hkv
        q = (lambda x, *d: x.permute(*d))((x @ wq).reshape(B, Sq, Hq, Dh), 0, 2, 1, 3)
        k = (lambda x, n, axis: torch.repeat_interleave(x, n, dim=axis))(k_cache, rep, axis=1)
        v = (lambda x, n, axis: torch.repeat_interleave(x, n, dim=axis))(v_cache, rep, axis=1)
        scores = torch.einsum("bhqd,bhkd->bhqk", q, k) * (Dh ** -0.5)
        p = _softmax(scores, axis=-1)
        o = torch.einsum("bhqk,bhkd->bhqd", p, v)
        return (lambda x, *d: x.permute(*d))(o, 0, 2, 1, 3).reshape(B, Sq, Hq * Dh) @ wo

    a = _A_ref(A_x, A_k_cache, A_v_cache, A_wq, A_wo)
    b = _B_ref(B_x, B_k_cache, B_v_cache, B_wq, B_wo)
    return torch.concatenate([a, b], axis=-1)
```

```python
import re

class Prog:
    def __init__(self):
        self.l = []
    def __call__(self, s):
        self.l.append(s)
    def lab(self, name):
        self.l.append(name + ':')
    def cmt(self, s):
        self.l.append('; ' + s)
    def extend(self, lst):
        for x in lst: self.l.append(x)

_reg = re.compile(r'\b([vas])(?:(\d+)|\[(\d+):(\d+)\])')
def regs_of(tok):
    out = set()
    for m in _reg.finditer(tok):
        k = m.group(1)
        if m.group(2) is not None:
            out.add((k, int(m.group(2))))
        else:
            for i in range(int(m.group(3)), int(m.group(4)) + 1): out.add((k, i))
    if re.search(r'\bvcc\b', tok): out.add(('s', 'vcc'))
    if re.search(r'\bm0\b', tok): out.add(('s', 'm0'))
    if re.search(r'\bexec\b', tok): out.add(('s', 'exec'))
    return out

def parse(ins):
    s = ins.split(';')[0].strip()
    if not s or s.endswith(':'): return None
    parts = s.split(None, 1)
    op = parts[0]
    ops = [o.strip() for o in re.split(r',(?![^\[]*\])', parts[1])] if len(parts) > 1 else []
    d = dict(op=op, cls='other', dst=set(), src=set(), text=s)
    R = lambda i: regs_of(ops[i]) if i < len(ops) else set()
    allr = lambda a: set().union(*[regs_of(o) for o in ops[a:]]) if len(ops) > a else set()
    if op.startswith('v_mfma'):
        d['cls'] = 'mfma'; d['dst'] = R(0); d['a'] = R(1); d['b'] = R(2); d['c'] = R(3); d['src'] = d['a'] | d['b'] | d['c']
        d['passes'] = 8 if '32x32' in op else 4
    elif op.startswith('v_cmp'):
        d['cls'] = 'valu'; d['dst'] = R(0); d['src'] = allr(1)
    elif op.startswith('v_readfirstlane') or op.startswith('v_readlane'):
        d['cls'] = 'valu'; d['dst'] = R(0); d['src'] = allr(1); d['rdlane'] = True
    elif op.startswith('v_permlane'):
        d['cls'] = 'valu'; d['dst'] = R(0) | R(1); d['src'] = R(0) | R(1); d['permlane'] = True
    elif op.startswith('v_'):
        d['cls'] = 'valu'; d['dst'] = R(0); d['src'] = allr(1)
        if op.startswith(('v_fmac', 'v_mac', 'v_pk_fmac')): d['src'] |= R(0)
        if op.startswith(('v_add_co', 'v_addc_co', 'v_sub_co')): d['dst'] |= R(1)
        if op.startswith('v_cndmask') and len(ops) == 3: d['src'].add(('s', 'vcc'))
        if op.startswith(('v_exp', 'v_log', 'v_rcp', 'v_rsq', 'v_sqrt', 'v_sin', 'v_cos')): d['trans'] = True
    elif op.startswith('ds_'):
        d['cls'] = 'ds'
        if op.startswith(('ds_read', 'ds_bpermute', 'ds_permute', 'ds_swizzle')):
            d['dst'] = R(0); d['src'] = allr(1)
        else:
            d['src'] = allr(0)
    elif op.startswith(('buffer_', 'global_')):
        d['cls'] = 'vmem'
        lds = bool(re.search(r'\blds\b', s))
        if 'load' in op and not lds and 'load_lds' not in op:
            d['dst'] = R(0); d['src'] = allr(1)
        elif 'atomic' in op and re.search(r'\bsc0\b', s):
            d['dst'] = R(0); d['src'] = allr(1)
        else:
            d['src'] = allr(0)
            if lds: d['src'].add(('s', 'm0')); d['ldsdma'] = True
        if 'store' in op and ('x4' in op or 'x3' in op):
            d['widestore'] = R(0) if op.startswith('buffer_') else R(1)
    elif op.startswith('s_'):
        d['cls'] = 'salu'
        if op.startswith(('s_cmp', 's_cbranch', 's_branch', 's_waitcnt', 's_barrier', 's_nop', 's_endpgm', 's_setprio', 's_sleep', 's_bitcmp')):
            d['src'] = allr(0)
        elif op.startswith('s_load') or op.startswith('s_mem'):
            d['cls'] = 'smem'; d['dst'] = R(0); d['src'] = allr(1)
        else:
            d['dst'] = R(0); d['src'] = allr(1)
            if op.startswith(('s_addk', 's_mulk')): d['src'] |= R(0)
    return d

def states(d):
    if d['op'] == 's_nop':
        return int(d['text'].split()[1], 0) + 1
    return 1

def hazard_pass(lines, verbose=False):
    out = []
    hist = []
    pos = 0
    ins_count = 0
    for ln in lines:
        d = parse(ln)
        if d is None:
            out.append(ln); continue
        need = 0
        why = ''
        isv = lambda r: r[0] in 'va'
        for (p, ppos) in reversed(hist[-24:]):
            dist = pos - ppos
            req = 0
            if p['cls'] == 'mfma':
                lat = 12 if p['passes'] == 8 else 8
                ovl = 10 if p['passes'] == 8 else 6
                D = p['dst']
                if d['cls'] == 'mfma':
                    if D & (d['a'] | d['b']): req = max(req, lat)
                    if D & d['c']:
                        if d['c'] != D: req = max(req, ovl)
                    if (D & d['dst']) and not (D & d['c']): req = max(req, lat)
                elif d['cls'] in ('valu', 'ds', 'vmem'):
                    if D & (d['src'] | d['dst']): req = max(req, lat)
                if d['cls'] == 'valu' and (p['c'] & d['dst']): req = max(req, 7 if p['passes'] == 8 else 3)
            elif p['cls'] == 'valu':
                W = p['dst']
                Wv = {r for r in W if isv(r)}
                Ws = {r for r in W if r[0] == 's'}
                if d['cls'] == 'mfma' and (Wv & d['src']): req = max(req, 2)
                if d.get('permlane') and (Wv & d['src']): req = max(req, 2)
                if d.get('rdlane') and (Wv & d['src']): req = max(req, 1)
                if p.get('trans') and d['cls'] in ('valu', 'mfma') and (Wv & d['src']): req = max(req, 1 if d['cls'] == 'valu' else 2)
                if Ws:
                    if d['cls'] == 'vmem' and (Ws & d['src']): req = max(req, 5)
                    if d['cls'] == 'valu' and (Ws & d['src']): req = max(req, 4 if d.get('rdlane') else 2)
                    if d['cls'] in ('salu', 'smem') and (Ws & d['src']): req = max(req, 4)
                    if ('s', 'exec') in Ws and d['cls'] in ('mfma',): req = max(req, 4)
            elif p['cls'] == 'salu':
                if ('s', 'm0') in p['dst'] and d.get('ldsdma'): req = max(req, 1)
            if p.get('widestore') and d['cls'] in ('valu', 'ds', 'vmem', 'mfma') and (p['widestore'] & d['dst']): req = max(req, 2)
            if req > dist and req - dist > need:
                need = req - dist; why = p['text']
        while need > 0:
            n = min(need, 16)
            out.append(f's_nop {n-1}' + (f'   ; hazard after: {why}' if verbose else ''))
            pos += n; need -= n
        out.append(ln)
        pos += states(d)
        hist.append((d, pos))
        if len(hist) > 64: hist = hist[-32:]
    return out

def render(lines):
    o = []
    for ln in lines:
        if ln.endswith(':') or ln.startswith(';') or ln.startswith('.'): o.append(ln)
        else: o.append('    ' + ln)
    return '\n'.join(o) + '\n'
```

```python
import sys, os
sys.path.insert(0, os.path.dirname(os.path.abspath(__file__)))
from asmir import *

NAME = 'concat_heads__gqa_block_cached__gqa_block_cached__near_ridge'

class Cfg:
    def __init__(s, **kw):
        s.stamps = False
        s.fl_x = ''
        s.fl_wq = 'nt'
        s.fl_k = 'nt'
        s.fl_v = 'nt'
        s.fl_wo = ''
        s.maxA = 4
        s.maxB = 6
        s.poll_at = 16
        s.sig_at = 2
        s.rot_a = True
        s.rot_b = True
        s.swap_r = True
        s.early_b = True
        for k, v in kw.items():
            assert hasattr(s, k), k
            setattr(s, k, v)

SRD_X, SRD_WQ, SRD_K, SRD_V, SRD_WO, SRD_P, SRD_OUT = 4, 8, 12, 16, 20, 24, 28
S_DBG = 32
S_W, S_BR, S_H, S_RG, S_MT, S_NT = 34, 35, 36, 37, 38, 39
S_LW, S_LX = 41, 42
S_SX = 44
S_SW = 51
S_SK = 58
S_COL = 62
S_ROW = 66
S_VB = 70
S_WO = 72
S_T, S_T2, S_T3 = 73, 74, 75
S_PST = 76
S_PLD = 77
S_OST = 81
S_FLAGP, S_FLAGC = 82, 83
S_EXPC = 84
S_VB1 = 85
S_WO1 = 87
S_WOC = 88
S_CNT = 89
S_ST = 90
TA, TB, TC, TD = 0, 1, 3, 43

V_W, V_X, V_R, V_WO = 4, 6, 10, 14
V_TW, V_TX, V_RW, V_RXQ, V_RX = 18, 20, 22, 26, 30
V_L16 = 34
V_EXW0, V_EXR, V_OST, V_EXW1 = 35, 36, 37, 39
V_FW, V_FR0, V_FR1 = 40, 41, 42
V_FLAG = 43
V_T0 = 44
PK = 64
ACC = 128
LDS_X = 98304
A_WF, A_XF, A_KF, A_S = 0, 16, 48, 128
A_VF, A_OF, A_OUT, A_PF = 0, 40, 128, 192

class VM:
    def __init__(s, P): s.P = P; s.n = 0; s.tags = {}; s.done = -1
    def issue(s, tag): s.tags[tag] = s.n; s.n += 1
    def wait(s, tag):
        i = s.tags[tag]
        if i <= s.done: return
        cnt = min(s.n - 1 - i, 63)
        s.done = i
        s.P(f's_waitcnt vmcnt({cnt})')
    def drain(s):
        s.done = s.n - 1
        s.P('s_waitcnt vmcnt(0)')

def vr(a, n=4, k='v'): return f'{k}[{a}:{a+n-1}]'

class Gen:
    def __init__(g, cfg):
        g.cfg = cfg
        g.P = Prog()
        g.vm = VM(g.P)
        g.stamp_n = 0
        g.free = set([('W', i) for i in range(24)] + [('X', j, p) for j in range(4) for p in range(4)])
        g.last_m0 = None
        g.qA = []; g.qB = []

    def stamp(g):
        if not g.cfg.stamps: return
        k = g.stamp_n; g.stamp_n += 1
        assert k < 5
        g.P(f's_memtime s[{S_ST+2*k}:{S_ST+2*k+1}]')

    def lds_of(g, loc):
        if loc[0] == 'W': return (S_LW, loc[1] * 1024)
        return (S_LX, loc[1] * 16384 + loc[2] * 1024)
    def dma(g, piece):
        P = g.P
        tag, loc, pre, vreg, srd_, soff, fl = piece
        assert loc in g.free, (tag, loc)
        g.free.discard(loc)
        base, off = g.lds_of(loc)
        if g.last_m0 is not None and g.last_m0[0] == base and off - g.last_m0[1] == 1024:
            P('s_addk_i32 m0, 0x400')
        else:
            P(f's_add_u32 m0, s{base}, {off}')
        g.last_m0 = (base, off)
        for x in pre: P(x)
        P(f'buffer_load_dwordx4 v{vreg}, s[{srd_}:{srd_+3}], s{soff} offen {fl} lds'.replace('  ', ' '))
        g.vm.issue(tag)
    def pc_x(g, c, p):   return (('x', c, p), ('X', c % 4, p), [], V_X + p, SRD_X, S_SX + c, g.cfg.fl_x)
    def pc_w(g, j, p):
        c, s = j >> 2, j & 3
        pre = []
        if p == 0:
            pre = [f's_add_u32 s{S_T}, s{S_SW+c}, {s*16*8192}'] if s else [f's_mov_b32 s{S_T}, s{S_SW+c}']
        return (('w', j, p), ('W', 2 * (j % 12) + p), pre, V_W + p, SRD_WQ, S_T, g.cfg.fl_wq)
    def pc_k(g, b, p):   return (('k', b, p), ('W', 8 + 4 * b + p), [], V_R + p, SRD_K, S_SK + b, g.cfg.fl_k)
    G = [('X', 3), ('X', 0), ('X', 1), ('W', 0), ('W', 1), ('X', 2), ('W', 2), ('W', 3), ('W', 4), ('W', 5)]
    def gloc(g, gi, q):
        t = g.G[gi % 10]
        return ('X', t[1], q) if t[0] == 'X' else ('W', 4 * t[1] + q)
    def grp_addr(g, gi):
        t = g.G[gi % 10]
        return (True, t[1] * 16384) if t[0] == 'X' else (False, t[1] * 4096)
    def gi_of(g, ch, item): return 6 * ch + item
    def pc_v(g, ch, b, p):
        r, c = ch >> 2, ch & 3
        vb = (S_VB if r == 0 else S_VB1) + b
        pre = [f's_add_u32 s{S_T2}, s{vb}, s{S_COL+c}'] if p == 0 else []
        return (('v', ch, b, p), g.gloc(g.gi_of(ch, b), p), pre, V_R + p, SRD_V, S_T2, g.cfg.fl_v)
    def pc_o(g, ch, s, q):
        r, c = ch >> 2, ch & 3
        pre = []
        if q == 0:
            if s == 0:
                pre = [f's_add_u32 s{S_WOC}, s{S_WO if r == 0 else S_WO1}, s{S_ROW+c}', f's_mov_b32 s{S_T3}, s{S_WOC}']
            else:
                pre = [f's_add_u32 s{S_T3}, s{S_WOC}, {s*16*896}']
        return (('o', ch, s, q), g.gloc(g.gi_of(ch, 2 + s), q), pre, V_WO + q, SRD_WO, S_T3, g.cfg.fl_wo)
    def pick(g, budget, useB=True):
        if g.qA and g.qA[0][1] in g.free: return g.qA.pop(0)
        if useB and g.qB and g.qB[0][1] in g.free: return g.qB.pop(0)
        return None

    def block(g, mf, readers, pre_read, maxdma, useB=True, extras=None, head=1):
        P = g.P
        extras = list(extras or [])
        readers = list(readers)
        nd = 0
        nm = len(mf)
        did_pre = False
        total = len(readers) + maxdma + len(extras)
        per = max(1, -(-total // max(nm - head + 1, 1)))
        dma_open = True
        def one():
            nonlocal nd, did_pre, dma_open
            if readers:
                if not did_pre:
                    pre_read(); did_pre = True
                P(readers.pop(0)); return True
            return False
        for i, m in enumerate(mf):
            P(m)
            if i + 1 < head: continue
            cnt = 0
            if nd < maxdma:
                pc = g.pick(0, useB)
                if pc: g.dma(pc); nd += 1; cnt += 1
            while cnt < per + 1:
                if one(): cnt += 1; continue
                if extras: P(extras.pop(0)); cnt += 1; continue
                if nd < maxdma:
                    pc = g.pick(0, useB)
                    if pc: g.dma(pc); nd += 1; cnt += 1; continue
                break
        if not did_pre: pre_read(); did_pre = True
        for x in readers: P(x)
        for x in extras: P(x)
        while nd < maxdma:
            pc = g.pick(0, useB)
            if not pc: break
            g.dma(pc); nd += 1

    def prologue(g):
        P, cfg = g.P, g.cfg
        P('s_cmp_ge_u32 s2, 256')
        P('s_cbranch_scc1 L_exit')
        P('s_load_dwordx16 s[76:91], s[0:1], 0')
        P('s_load_dwordx4 s[92:95], s[0:1], 64')
        P('s_load_dwordx4 s[96:99], s[0:1], 80')
        P('s_load_dwordx2 s[100:101], s[0:1], 96')
        P('v_lshrrev_b32 v1, 6, v0')
        P('v_and_b32 v0, 63, v0')
        P(f'v_readfirstlane_b32 s{S_W}, v1')
        P('s_and_b32 s60, s2, 7')
        P('s_lshr_b32 s61, s2, 3')
        P(f's_lshr_b32 s{S_BR}, s60, 2')
        P('s_and_b32 s62, s60, 3')
        P('s_and_b32 s63, s61, 3')
        P(f's_lshl_b32 s{S_H}, s62, 2'); P(f's_add_u32 s{S_H}, s{S_H}, s63')
        P(f's_lshr_b32 s{S_RG}, s61, 2')
        P(f's_mov_b32 s{S_MT}, s{S_H}')
        P(f's_lshr_b32 s{S_NT}, s61, 2')
        P('v_lshrrev_b32 v1, 3, v0')
        P('v_and_b32 v2, 7, v0')
        P('v_bfe_u32 v3, v0, 4, 1')
        P('v_lshlrev_b32 v3, 2, v3')
        P('v_xor_b32 v3, v3, v2')
        P('v_lshlrev_b32 v3, 4, v3')
        P(f'v_lshlrev_b32 v{V_W}, 13, v1'); P(f'v_add_u32 v{V_W}, v{V_W}, v3')
        P(f'v_add_u32 v{V_W+1}, 0x10000, v{V_W}')
        P(f'v_mul_u32_u24 v{V_WO}, 896, v1'); P(f'v_add_u32 v{V_WO}, v{V_WO}, v3')
        P(f'v_add_u32 v{V_WO+1}, {8*896}, v{V_WO}')
        P(f'v_add_u32 v{V_WO+2}, {256*896}, v{V_WO}')
        P(f'v_add_u32 v{V_WO+3}, {264*896}, v{V_WO}')
        P('v_lshrrev_b32 v3, 4, v0')
        P('v_xor_b32 v3, v3, v2')
        P(f'v_lshlrev_b32 v{V_T0}, 4, v3')
        P('v_xor_b32 v3, 4, v3')
        P(f'v_lshlrev_b32 v{V_T0+1}, 4, v3')
        P(f'v_mul_u32_u24 v{V_T0+2}, 896, v1')
        P(f'v_lshlrev_b32 v{V_T0+3}, 9, v1')
        for p in range(4):
            P(f'v_add_u32 v{V_X+p}, v{V_T0+(p&1)}, v{V_T0+2}')
            if p: P(f'v_add_u32 v{V_X+p}, {p*8*896}, v{V_X+p}')
            P(f'v_add_u32 v{V_R+p}, v{V_T0+(p&1)}, v{V_T0+3}')
            if p: P(f'v_add_u32 v{V_R+p}, {p*4096}, v{V_R+p}')
        P(f's_mul_i32 s{S_LW}, s{S_W}, 24576')
        P(f's_lshl_b32 s{S_LX}, s{S_W}, 12'); P(f's_add_u32 s{S_LX}, s{S_LX}, {LDS_X}')
        if cfg.rot_a:
            P('s_lshl_b32 s64, s63, 1'); P(f's_add_u32 s64, s64, s{S_RG}')
            P('s_cmp_ge_u32 s64, 7'); P('s_cselect_b32 s65, 7, 0'); P('s_sub_u32 s64, s64, s65')
        else:
            P('s_mov_b32 s64, 0')
        P(f's_lshl_b32 s65, s{S_RG}, 2'); P(f's_add_u32 s65, s65, s{S_W}')
        P(f's_mul_i32 s66, s65, {32*896}')
        P(f's_lshl_b32 s67, s{S_H}, 9'); P(f's_lshl_b32 s68, s{S_W}, 7'); P('s_add_u32 s67, s67, s68')
        for c in range(7):
            P(f's_lshl_b32 s69, s64, 7'); P(f's_add_u32 s{S_SX+c}, s66, s69')
            P(f's_lshl_b32 s69, s64, 19'); P(f's_add_u32 s{S_SW+c}, s67, s69')
            if c < 6:
                P('s_add_u32 s64, s64, 1'); P('s_cmp_eq_u32 s64, 7'); P('s_cselect_b32 s64, 0, s64')
        P('s_waitcnt lgkmcnt(0)')
        P(f's_cmp_eq_u32 s{S_BR}, 0')
        def srd(base, a, b, size):
            P(f's_cselect_b32 s{base}, s{a}, s{b}')
            P(f's_cselect_b32 s{base+1}, s{a+1}, s{b+1}')
            P(f's_mov_b32 s{base+2}, {size}')
            P(f's_mov_b32 s{base+3}, 0x20000')
        srd(SRD_X, 76, 86, 917504)
        srd(SRD_WQ, 82, 92, 3670016)
        srd(SRD_K, 78, 88, 4194304)
        srd(SRD_V, 80, 90, 4194304)
        srd(SRD_WO, 84, 94, 3670016)
        for b_ in (SRD_X, SRD_WQ, SRD_K, SRD_V, SRD_WO):
            P(f's_and_b32 s{b_+1}, s{b_+1}, 0xffff')
        if cfg.stamps:
            P(f's_memrealtime s[{S_ST+10}:{S_ST+11}]') if False else None
        for c in range(3):
            for p in range(4): g.dma(g.pc_x(c, p))
            for s in range(4):
                for p in range(2): g.dma(g.pc_w(4 * c + s, p))
        for p in range(4): g.dma(g.pc_x(3, p))
        P(f's_mov_b32 s{SRD_OUT}, s96'); P(f's_and_b32 s{SRD_OUT+1}, s97, 0xffff'); P(f's_mov_b32 s{SRD_OUT+2}, 1835008'); P(f's_mov_b32 s{SRD_OUT+3}, 0x20000')
        P(f's_mov_b32 s{SRD_P}, s100'); P(f's_and_b32 s{SRD_P+1}, s101, 0xffff'); P(f's_mov_b32 s{SRD_P+2}, {(8<<20) if cfg.stamps else (2<<20)}'); P(f's_mov_b32 s{SRD_P+3}, 0x20000')
        P(f's_mov_b32 s{S_DBG}, s98'); P(f's_mov_b32 s{S_DBG+1}, s99')
        P(f's_cmp_lt_u32 s{S_NT}, 7')
        P(f's_cselect_b32 s{SRD_V+2}, s{SRD_V+2}, 0')
        P(f's_cselect_b32 s{SRD_WO+2}, s{SRD_WO+2}, 0')
        if cfg.stamps:
            P(f's_memrealtime s[{S_ST+10}:{S_ST+11}]')
        g.stamp()
        T = V_T0
        P('v_lshrrev_b32 v1, 4, v0'); P('v_lshrrev_b32 v2, 1, v1'); P('v_and_b32 v1, 1, v1')
        P('v_bfe_u32 v3, v0, 2, 2')
        P(f'v_and_b32 v{T}, 3, v0')
        P(f'v_lshlrev_b32 v{T+1}, 1, v1'); P(f'v_and_b32 v{T+2}, 1, v{T}'); P(f'v_add_u32 v{T+1}, v{T+1}, v{T+2}')
        P(f'v_lshrrev_b32 v{T+2}, 1, v3'); P(f'v_lshlrev_b32 v{T+2}, 2, v{T+2}'); P(f'v_xor_b32 v{T+1}, v{T+1}, v{T+2}')
        P(f'v_lshlrev_b32 v{T+1}, 4, v{T+1}')
        P(f'v_lshrrev_b32 v{T+2}, 1, v{T}'); P(f'v_lshlrev_b32 v{T+2}, 3, v{T+2}'); P(f'v_add_u32 v{T+1}, v{T+1}, v{T+2}')
        P(f'v_lshlrev_b32 v{T+2}, 7, v3'); P(f'v_add_u32 v{T+1}, v{T+1}, v{T+2}')
        P(f'v_lshlrev_b32 v{T+2}, 10, v2'); P(f'v_add_u32 v{T+1}, v{T+1}, v{T+2}')
        P(f'v_xor_b32 v{T+2}, 64, v{T+1}')
        for t in range(2):
            P(f'v_add_u32 v{V_TW+t}, s{S_LW}, v{T+1+t}')
            P(f'v_add_u32 v{V_TX+t}, s{S_LX}, v{T+1+t}')
        P('v_and_b32 v1, 31, v0'); P('v_lshrrev_b32 v2, 5, v0'); P('v_bfe_u32 v3, v1, 1, 3'); P('v_xor_b32 v3, v3, v2')
        P('v_lshlrev_b32 v3, 4, v3'); P(f'v_lshlrev_b32 v{T}, 7, v1'); P(f'v_add_u32 v3, v3, v{T}')
        for s in range(4):
            P(f'v_xor_b32 v{T}, {32*s}, v3')
            P(f'v_add_u32 v{V_RW+s}, s{S_LW}, v{T}')
            P(f'v_add_u32 v{V_RXQ+s}, s{S_LX}, v{T}')
            P(f'v_add_u32 v{V_RX+s}, {LDS_X}, v{T}')
        P(f'v_lshlrev_b32 v{V_L16}, 4, v0')
        P(f's_lshl_b32 s{TA}, s{S_W}, 12')
        P(f'v_add_u32 v{V_FR0}, s{TA}, v{V_L16}')
        P(f'v_add_u32 v{V_FR1}, 49152, v{V_FR0}')
        P(f'v_add_u32 v{V_EXW0}, 8192, v{V_FR0}')
        P(f'v_add_u32 v{V_EXW1}, 8192, v{V_FR1}')
        P(f'v_add_u32 v{V_FW}, s{S_LW}, v{V_L16}')
        P(f'v_add_u32 v{V_EXR}, 8192, v{V_FW}')
        P(f'v_mul_u32_u24 v{V_OST}, 1792, v1'); P('v_lshlrev_b32 v2, 4, v2'); P(f'v_add_u32 v{V_OST}, v{V_OST}, v2')
        P(f's_lshr_b32 s{TA}, s{S_H}, 1')
        P(f's_lshl_b32 s{TB}, s{S_RG}, 5'); P(f's_add_u32 s{TA}, s{TA}, s{TB}')
        P(f's_lshl_b32 s{TA}, s{TA}, 14'); P(f's_lshl_b32 s{TB}, s{S_W}, 7'); P(f's_add_u32 s{S_SK}, s{TA}, s{TB}')
        for b in range(1, 4): P(f's_add_u32 s{S_SK+b}, s{S_SK}, {b*8*16384}')
        P(f's_and_b32 s{TA}, s{S_H}, 3')
        P(f's_lshr_b32 s{TB}, s{S_H}, 2')
        if cfg.rot_b:
            P(f's_add_u32 s{TC}, s{TA}, s{S_NT}'); P(f's_and_b32 s{TC}, s{TC}, 3')
        else:
            P(f's_mov_b32 s{TC}, 0')
        for c in range(4):
            P(f's_lshl_b32 s{S_COL+c}, s{TC}, 7'); P(f's_mul_i32 s{S_ROW+c}, s{TC}, {64*896}')
            if c < 3: P(f's_add_u32 s{TC}, s{TC}, 1'); P(f's_and_b32 s{TC}, s{TC}, 3')
        if cfg.swap_r:
            P(f's_lshr_b32 s{TC}, s{TB}, 1')
        else:
            P(f's_mov_b32 s{TC}, 0')
        P(f's_lshl_b32 s{TD}, s{S_W}, 1'); P(f's_add_u32 s{TA}, s{TD}, s{TC}')
        P(f's_xor_b32 s{TC}, s{TC}, 1'); P(f's_add_u32 s{TB}, s{TD}, s{TC}')
        P(f's_lshl_b32 s{TC}, s{S_MT}, 4')
        for r, kv in ((0, TA), (1, TB)):
            vb = S_VB if r == 0 else S_VB1
            P(f's_add_u32 s{TD}, s{TC}, s{kv}'); P(f's_lshl_b32 s{vb}, s{TD}, 14'); P(f's_add_u32 s{vb+1}, s{vb}, {8*16384}')
            wo = S_WO if r == 0 else S_WO1
            P(f's_mul_i32 s{wo}, s{kv}, {512*896}'); P(f's_lshl_b32 s{TD}, s{S_NT}, 7'); P(f's_add_u32 s{wo}, s{wo}, s{TD}')
            P(f's_lshl_b32 s{TD}, s{S_BR}, 5'); P(f's_lshl_b32 s{S_T}, s{S_MT}, 1'); P(f's_add_u32 s{TD}, s{TD}, s{S_T}')
            P(f's_lshl_b32 s{TD}, s{TD}, 4'); P(f's_lshl_b32 s{S_T}, s{kv}, 1'); P(f's_add_u32 s{TD}, s{TD}, s{S_T}')
            P(f's_lshl_b32 s{S_PLD+2*r}, s{TD}, 11'); P(f's_add_u32 s{S_PLD+2*r+1}, s{S_PLD+2*r}, {16*2048}')
        P(f's_lshl_b32 s{TA}, s{S_BR}, 5'); P(f's_lshl_b32 s{TB}, s{S_RG}, 2'); P(f's_add_u32 s{TA}, s{TA}, s{TB}'); P(f's_add_u32 s{TA}, s{TA}, s{S_W}')
        P(f's_lshl_b32 s{TA}, s{TA}, 4'); P(f's_add_u32 s{TA}, s{TA}, s{S_H}'); P(f's_lshl_b32 s{S_PST}, s{TA}, 11')
        P(f's_lshl_b32 s{TA}, s{S_MT}, 1'); P(f's_lshr_b32 s{TB}, s{S_W}, 1'); P(f's_add_u32 s{TA}, s{TA}, s{TB}'); P(f's_mul_i32 s{TA}, s{TA}, {32*1792}')
        P(f's_mul_i32 s{TB}, s{S_BR}, 896'); P(f's_add_u32 s{TA}, s{TA}, s{TB}'); P(f's_lshl_b32 s{TB}, s{S_NT}, 7'); P(f's_add_u32 s{TA}, s{TA}, s{TB}')
        P(f's_and_b32 s{TB}, s{S_W}, 1'); P(f's_lshl_b32 s{TB}, s{TB}, 6'); P(f's_add_u32 s{S_OST}, s{TA}, s{TB}')
        P(f's_lshl_b32 s{TA}, s{S_BR}, 3'); P(f's_add_u32 s{TB}, s{TA}, s{S_RG}'); P(f's_lshl_b32 s{TB}, s{TB}, 2'); P(f's_lshr_b32 s{TC}, s{S_H}, 2')
        P(f's_add_u32 s{TB}, s{TB}, s{TC}'); P(f's_lshl_b32 s{S_FLAGP}, s{TB}, 2')
        P(f's_lshr_b32 s{TB}, s{S_MT}, 1'); P(f's_add_u32 s{TB}, s{TA}, s{TB}'); P(f's_lshl_b32 s{TB}, s{TB}, 2'); P(f's_add_u32 s{TB}, s{TB}, s{S_W}')
        P(f's_lshl_b32 s{S_FLAGC}, s{TB}, 2')
        P(f's_mov_b32 s{S_EXPC}, 0x3db8aa3b')
        qA = []
        for j in range(12, 28):
            if j in (16, 20, 24): qA += [g.pc_x(j // 4, p) for p in range(4)]
            qA += [g.pc_w(j, 0), g.pc_w(j, 1)]
        for b in range(4): qA += [g.pc_k(b, p) for p in range(4)]
        g.qA = qA
        qB = []
        for ch in range(8):
            for b in range(2): qB += [g.pc_v(ch, b, p) for p in range(4)]
            for s in range(4): qB += [g.pc_o(ch, s, q) for q in range(4)]
        g.qB = qB

    def a_reads(g, j):
        c, s = j >> 2, j & 3
        st = j & 1
        out = []
        wo = 2 * (j % 12) * 1024
        for t in range(2):
            d = A_WF + 8 * st + 4 * t
            out.append(f'ds_read_b64_tr_b16 a[{d}:{d+1}], v{V_TW+t} offset:{wo}')
            out.append(f'ds_read_b64_tr_b16 a[{d+2}:{d+3}], v{V_TW+t} offset:{wo+512}')
        xr = []
        for b in range(4):
            d = A_XF + 16 * st + 4 * b
            xr.append(f'ds_read_b128 a[{d}:{d+3}], v{V_RX+s} offset:{(c % 4) * 16384 + b * 4096}')
        return out[0:2] + xr[0:2] + out[2:4] + xr[2:4]
    def a_mfmas(g, j):
        st = j & 1
        out = []
        for t in range(2):
            for b in range(4):
                acc = ACC + 16 * (4 * t + b)
                C = '0' if j == 0 else vr(acc, 16)
                out.append(f'v_mfma_f32_32x32x16_bf16 {vr(acc,16)}, {vr(A_WF+8*st+4*t,4,"a")}, {vr(A_XF+16*st+4*b,4,"a")}, {C}')
        return out
    def phaseA(g):
        P, cfg, vm = g.P, g.cfg, g.vm
        vm.wait(('w', 0, 1))
        P('s_barrier')
        g.stamp()
        for x in g.a_reads(0): P(x)
        for j in range(28):
            c, s = j >> 2, j & 3
            P('s_waitcnt lgkmcnt(0)')
            g.free.add(('W', 2 * (j % 12))); g.free.add(('W', 2 * (j % 12) + 1))
            nxt = j + 1
            def pre():
                if nxt < 28:
                    if nxt & 3 == 0:
                        vm.wait(('x', nxt >> 2, 3))
                        vm.wait(('w', nxt, 1))
                        P('s_barrier')
                        for p in range(4): g.free.add(('X', c % 4, p))
                    else:
                        vm.wait(('w', nxt, 1))
            readers = g.a_reads(nxt) if nxt < 28 else []
            g.block(g.a_mfmas(j), readers, pre, cfg.maxA, useB=cfg.early_b, head=(2 if (nxt < 28 and nxt & 3 == 0) else 1))
        assert not g.qA, g.qA

    def phaseS(g):
        P, cfg, vm = g.P, g.cfg, g.vm
        g.stamp()
        vm.wait(('k', 3, 3))
        kr = []
        for b in range(4):
            for u in range(4):
                d = A_KF + 16 * b + 4 * u
                kr.append(f'ds_read_b128 a[{d}:{d+3}], v{V_RW+u} offset:{(8 + 4*b) * 1024}')
        cv = []
        order = [(t, b) for b in range(4) for t in range(2)]
        for (t, b) in [(0,0),(0,1),(0,2),(0,3),(1,0),(1,1),(1,2),(1,3)]:
            for i in range(8):
                acc = ACC + 16 * (4 * t + b)
                cv.append(f'v_cvt_pk_bf16_f32 v{PK + 8*(4*t+b) + i}, v{acc+2*i}, v{acc+2*i+1}')
        for i in range(16):
            P(kr[i])
        for x in cv[:32]: P(x)
        P('s_waitcnt lgkmcnt(0)')
        P('s_barrier')
        for p in range(4): g.free.add(('X', 2, p))
        mf0, mf1 = [], []
        for b in range(4):
            for u in range(2):
                acc = A_S + 16 * b
                C = '0' if u == 0 else vr(acc, 16, 'a')
                mf0.append(f'v_mfma_f32_32x32x16_bf16 {vr(acc,16,"a")}, {vr(A_KF+16*b+4*u,4,"a")}, {vr(PK+8*b+4*u,4)}, {C}')
                mf1.append(f'v_mfma_f32_32x32x16_bf16 {vr(acc,16,"a")}, {vr(A_KF+16*b+4*(2+u),4,"a")}, {vr(PK+8*(4+b)+4*u,4)}, {vr(acc,16,"a")}')
        g.block(mf0, [], lambda: None, 4, useB=True, extras=cv[32:])
        g.block(mf1, [], lambda: None, 4, useB=True)
        for b in range(4):
            for q in range(4):
                base = V_EXW0 if b < 2 else V_EXW1
                P(f'ds_write_b128 v{base}, {vr(A_S+16*b+4*q,4,"a")} offset:{(b&1)*24576 + q*1024}')
        P('s_waitcnt lgkmcnt(0)')
        P('s_barrier')
        for src in range(4):
            for q in range(4):
                P(f'ds_read_b128 {vr(ACC+16*src+4*q,4)}, v{V_EXR} offset:{src*4096 + q*1024}')
        P('s_waitcnt lgkmcnt(0)')
        for i in range(8, 24): g.free.add(('W', i))
        sm = []
        S = ACC
        for r in range(16): sm.append(f'v_add_f32 v{S+r}, v{S+r}, v{S+16+r}')
        for r in range(16): sm.append(f'v_add_f32 v{S+32+r}, v{S+32+r}, v{S+48+r}')
        for r in range(16): sm.append(f'v_add_f32 v{S+r}, v{S+r}, v{S+32+r}')
        T = V_T0
        sm.append(f'v_max3_f32 v{T}, v{S}, v{S+1}, v{S+2}')
        for r in range(3, 15, 2): sm.append(f'v_max3_f32 v{T}, v{T}, v{S+r}, v{S+r+1}')
        sm.append(f'v_max_f32 v{T}, v{T}, v{S+15}')
        sm.append(f'v_mov_b32 v{T+1}, v{T}')
        sm.append(f'v_permlane32_swap_b32 v{T}, v{T+1}')
        sm.append(f'v_max_f32 v{T}, v{T}, v{T+1}')
        sm.append(f'v_mul_f32 v{T}, s{S_EXPC}, v{T}')
        for r in range(16): sm.append(f'v_fma_f32 v{S+r}, v{S+r}, s{S_EXPC}, -v{T}')
        for r in range(16): sm.append(f'v_exp_f32 v{S+r}, v{S+r}')
        for r in range(8): sm.append(f'v_add_f32 v{S+16+r}, v{S+2*r}, v{S+2*r+1}')
        for r in range(4): sm.append(f'v_add_f32 v{S+16+r}, v{S+16+2*r}, v{S+16+2*r+1}')
        for r in range(2): sm.append(f'v_add_f32 v{S+16+r}, v{S+16+2*r}, v{S+16+2*r+1}')
        sm.append(f'v_add_f32 v{T}, v{S+16}, v{S+17}')
        sm.append(f'v_mov_b32 v{T+1}, v{T}')
        sm.append(f'v_permlane32_swap_b32 v{T}, v{T+1}')
        sm.append(f'v_add_f32 v{T}, v{T}, v{T+1}')
        sm.append(f'v_rcp_f32 v{T}, v{T}')
        for r in range(16): sm.append(f'v_mul_f32 v{S+r}, v{S+r}, v{T}')
        for i in range(8): sm.append(f'v_cvt_pk_bf16_f32 v{T+4+i}, v{S+2*i}, v{S+2*i+1}')
        k = 0
        for x in sm:
            P(x); k += 1
            if k % 6 == 0:
                pc = g.pick(0, True)
                if pc: g.dma(pc)
        for u in range(2):
            P(f'buffer_store_dwordx4 {vr(T+4+4*u,4)}, v{V_L16}, s[{SRD_P}:{SRD_P+3}], s{S_PST} offen offset:{u*1024} sc1')
            vm.issue(('pst', u))
        g.stamp()
        P(f's_cmp_lt_u32 s{S_NT}, 7')
        P('s_cbranch_scc1 L_hasB')
        P('s_waitcnt vmcnt(0)')
        P('s_barrier')
        g.signal('a')
        g.finish_stamps('a')
        P('s_endpgm')
        P.lab('L_hasB')

    def signal(g, tag):
        P = g.P
        P(f's_cmp_eq_u32 s{S_W}, 0')
        P(f's_cbranch_scc0 L_sig_{tag}')
        P(f'v_mov_b32 v{V_T0+12}, s{S_FLAGP}')
        P(f'v_mov_b32 v{V_T0+13}, 1')
        P(f'v_cmp_eq_u32 vcc, 0, v0')
        P(f's_and_saveexec_b64 s[{S_T}:{S_T+1}], vcc') if False else None
        P('s_mov_b64 exec, 1')
        P(f'global_atomic_add v{V_T0+12}, v{V_T0+13}, s[{S_DBG}:{S_DBG+1}]')
        P('s_mov_b64 exec, -1')
        P.lab(f'L_sig_{tag}')

    def b_steps(g): return [(ch, s) for ch in range(8) for s in range(4)]
    def vset(g, ch, s): return A_VF + ((4 * ch + s) % 5) * 8
    def b_reads_V(g, ch):
        out = []
        for s in range(4):
            for b in range(2):
                isx, off = g.grp_addr(g.gi_of(ch, b))
                d = g.vset(ch, s) + 4 * b
                out.append(f'ds_read_b128 a[{d}:{d+3}], v{(V_RXQ if isx else V_RW)+s} offset:{off}')
        return out
    def b_reads_O(g, k):
        ch, s = k >> 2, k & 3
        isx, off = g.grp_addr(g.gi_of(ch, 2 + s))
        out = []
        for hh in range(2):
            for t in range(2):
                d = A_OF + 16 * (k & 1) + 8 * hh + 4 * t
                a = (V_TX if isx else V_TW) + t
                out.append(f'ds_read_b64_tr_b16 a[{d}:{d+1}], v{a} offset:{off + hh*2048}')
                out.append(f'ds_read_b64_tr_b16 a[{d+2}:{d+3}], v{a} offset:{off + hh*2048 + 512}')
        return out
    def b_mfmas(g, k):
        ch, s = k >> 2, k & 3
        first = (k % 16 == 0)
        out = []
        for hh in range(2):
            for t in range(2):
                for b in range(2):
                    acc = ACC + 16 * (4 * hh + 2 * t + b)
                    C = '0' if first else vr(acc, 16)
                    out.append(f'v_mfma_f32_32x32x16_bf16 {vr(acc,16)}, {vr(g.vset(ch,s)+4*b,4,"a")}, {vr(A_OF+16*(k&1)+8*hh+4*t,4,"a")}, {C}')
        return out
    def cvt_tile(g, tile):
        acc = ACC + 16 * tile
        return [f'v_cvt_pk_bf16_f32 v{PK+8*tile+i}, v{acc+2*i}, v{acc+2*i+1}' for i in range(8)]
    def c_mfmas(g, r):
        out = []
        for hh in range(2):
            for u in range(2):
                for nn in range(2):
                    for b in range(2):
                        tile = 4 * hh + 2 * nn + b
                        acc = A_OUT + 16 * (2 * b + nn)
                        C = '0' if (r == 0 and hh == 0 and u == 0) else vr(acc, 16, 'a')
                        out.append(f'v_mfma_f32_32x32x16_bf16 {vr(acc,16,"a")}, {vr(PK+8*tile+4*u,4)}, {vr(A_PF+32*r+16*hh+8*b+4*u,4,"a")}, {C}')
        return out
    def p_loads(g, r):
        out = []
        for hh in range(2):
            for b in range(2):
                for u in range(2):
                    d = A_PF + 32 * r + 16 * hh + 8 * b + 4 * u
                    out.append((('pld', r, hh, b, u), f'buffer_load_dwordx4 a[{d}:{d+3}], v{V_L16}, s[{SRD_P}:{SRD_P+3}], s{S_PLD+2*r+b} offen offset:{hh*2048+u*1024} sc1'))
        return out

    def phaseB(g):
        P, cfg, vm = g.P, g.cfg, g.vm
        while ('o', 0, 0, 3) not in vm.tags:
            pc = g.pick(0, True); assert pc; g.dma(pc)
        vm.wait(('o', 0, 0, 3))
        for x in g.b_reads_V(0) + g.b_reads_O(0): P(x)
        pl = []
        cm0 = []
        for k in range(32):
            ch, s = k >> 2, k & 3
            P('s_waitcnt lgkmcnt(0)')
            for q in range(4): g.free.add(g.gloc(g.gi_of(ch, 2 + s), q))
            if s == 0:
                for b in range(2):
                    for q in range(4): g.free.add(g.gloc(g.gi_of(ch, b), q))
            nxt = k + 1
            readers = []
            if nxt < 32:
                ch2, s2 = nxt >> 2, nxt & 3
                readers = (g.b_reads_O(nxt) if s2 else g.b_reads_V(ch2)[:2] + g.b_reads_O(nxt) + g.b_reads_V(ch2)[2:])
            def pre():
                if nxt < 32:
                    while ('o', nxt >> 2, nxt & 3, 3) not in vm.tags:
                        pc = g.pick(0, True); assert pc, (k, g.qB[0]); g.dma(pc)
                    vm.wait(('o', nxt >> 2, nxt & 3, 3))
            mf = g.b_mfmas(k)
            extras = []
            if k == cfg.sig_at:
                vm.wait(('pst', 1))
                P('s_barrier')
                g.signal('b')
            if k == 16:
                mf2 = []
                for i, m in enumerate(mf):
                    tile = i
                    mf2.append((g.cvt_tile(tile), m))
                did = False
                for i, (cv, m) in enumerate(mf2):
                    for x in cv: P(x)
                    P(m)
                    if i == 0:
                        pre()
                        rd = list(readers)
                    for _ in range(2):
                        if rd: P(rd.pop(0))
                    pc = g.pick(0, True)
                    if pc: g.dma(pc)
                for x in rd: P(x)
            else:
                if k == cfg.poll_at + 1:
                    P(f'v_mov_b32 v{V_FLAG+0}, v{V_FLAG}') if False else None
                if cm0 and k >= cfg.poll_at + 8:
                    take, cm0 = cm0[:4], cm0[4:]
                    mf = [x for pair in zip(mf[0::2], take) for x in pair] + [] if False else mf
                    mfx = []
                    for i, m in enumerate(mf):
                        mfx.append(m)
                        if i % 2 == 1 and take: mfx.append(take.pop(0))
                    mf = mfx
                g.block(mf, readers, pre, cfg.maxB, useB=True, extras=extras)
            if k == cfg.poll_at:
                P(f'v_mov_b32 v{V_T0}, s{S_FLAGC}')
                P(f'global_load_dword v{V_FLAG}, v{V_T0}, s[{S_DBG}:{S_DBG+1}] sc1')
                vm.issue('poll')
            if k == cfg.poll_at + 2:
                vm.wait('poll')
                P(f'v_readfirstlane_b32 s{S_CNT}, v{V_FLAG}')
                P(f's_cmp_ge_u32 s{S_CNT}, 4')
                P('s_cbranch_scc1 L_pready')
                P(f's_mov_b32 s{S_T}, 0')
                P.lab('L_spin')
                P('s_sleep 4')
                P(f'global_load_dword v{V_FLAG}, v{V_T0}, s[{S_DBG}:{S_DBG+1}] sc1')
                P('s_waitcnt vmcnt(0)')
                P(f'v_readfirstlane_b32 s{S_CNT}, v{V_FLAG}')
                P(f's_add_u32 s{S_T}, s{S_T}, 1')
                P(f's_cmp_ge_u32 s{S_T}, 0x8000')
                P('s_cbranch_scc1 L_pready')
                P(f's_cmp_ge_u32 s{S_CNT}, 4')
                P('s_cbranch_scc0 L_spin')
                P.lab('L_pready')
                g.last_m0 = None
                for tag, x in g.p_loads(0) + g.p_loads(1):
                    P(x); vm.issue(tag)
            if k == cfg.poll_at + 7:
                vm.wait(('pld', 1, 1, 1, 1))
                cm0 = g.c_mfmas(0)
        assert not g.qB and not cm0, (len(g.qB), len(cm0))
        g.stamp()
        cm = g.c_mfmas(1)
        for hh in range(2):
            for tile in range(4 * hh, 4 * hh + 4):
                for x in g.cvt_tile(tile): P(x)
            for m in cm[8 * hh: 8 * hh + 8]: P(m)
        for tt in range(4):
            for q in range(4):
                P(f'ds_write_b128 v{V_FW}, {vr(A_OUT+16*tt+4*q,4,"a")} offset:{tt*4096 + q*1024}')
        P('s_waitcnt lgkmcnt(0)')
        P('s_barrier')
        for src in range(4):
            for q in range(4):
                base = V_FR0 if src < 2 else V_FR1
                P(f'ds_read_b128 {vr(ACC+16*src+4*q,4)}, v{base} offset:{(src&1)*24576 + q*1024}')
        P('s_waitcnt lgkmcnt(0)')
        S = ACC
        for r in range(16): P(f'v_add_f32 v{S+r}, v{S+r}, v{S+16+r}')
        for r in range(16): P(f'v_add_f32 v{S+32+r}, v{S+32+r}, v{S+48+r}')
        for r in range(16): P(f'v_add_f32 v{S+r}, v{S+r}, v{S+32+r}')
        for i in range(8): P(f'v_cvt_pk_bf16_f32 v{V_T0+i}, v{S+2*i}, v{S+2*i+1}')
        for u in range(2):
            P(f'buffer_store_dwordx4 {vr(V_T0+4*u,4)}, v{V_OST}, s[{SRD_OUT}:{SRD_OUT+3}], s{S_OST} offen offset:{u*32}')
        g.finish_stamps('b')
        P('s_endpgm')

    def finish_stamps(g, tag):
        P = g.P
        if not g.cfg.stamps: return
        P('s_waitcnt vmcnt(0)')
        P(f's_memrealtime s[{S_T}:{S_T+1}]')
        P(f's_memtime s[{S_SX}:{S_SX+1}]')
        P('s_waitcnt lgkmcnt(0)')
        P(f's_cmp_eq_u32 s{S_W}, 0')
        P(f's_cbranch_scc0 L_st_{tag}')
        T = V_T0
        P(f'v_mov_b32 v{T}, s{S_ST+10}'); P(f'v_mov_b32 v{T+1}, s{S_ST+11}'); P(f'v_mov_b32 v{T+2}, s{S_T}'); P(f'v_mov_b32 v{T+3}, s{S_T+1}')
        for k in range(5): P(f'v_mov_b32 v{T+4+k}, s{S_ST+2*k}')
        P(f'v_mov_b32 v{T+9}, s{S_SX}'); P(f'v_mov_b32 v{T+10}, 0'); P(f'v_mov_b32 v{T+11}, 0')
        P(f's_lshl_b32 s{S_T}, s2, 6'); P(f's_add_u32 s{S_T}, s{S_T}, {4<<20}')
        P(f'v_mov_b32 v{T+12}, 0')
        P('s_mov_b64 exec, 1')
        for i in range(3):
            P(f'buffer_store_dwordx4 {vr(T+4*i,4)}, v{T+12}, s[{SRD_P}:{SRD_P+3}], s{S_T} offen offset:{16*i}')
        P('s_mov_b64 exec, -1')
        P.lab(f'L_st_{tag}')

    def build(g):
        g.prologue()
        g.phaseA()
        g.phaseS()
        g.phaseB()
        g.P.lab('L_exit')
        g.P('s_endpgm')
        return hazard_pass([x for x in g.P.l if x is not None])

HEADER = '''; Fused two-branch GQA block: Q-projection + scores + softmax (phase A, publishes P), V*Wo (phase B), P*(V*Wo) (phase C).
; @launch grid=(256,1,1) block=(256,1,1) lds=163840
.amdgcn_target "amdgcn-amd-amdhsa--gfx950"
.text
.globl {n}_kernel
.p2align 8
.type {n}_kernel,@function
{n}_kernel:
'''
FOOTER = '''.section .rodata,"a"
.p2align 6
.amdhsa_kernel {n}_kernel
  .amdhsa_next_free_vgpr 512
  .amdhsa_next_free_sgpr 102
  .amdhsa_accum_offset 256
  .amdhsa_group_segment_fixed_size 0
  .amdhsa_kernarg_size 104
  .amdhsa_user_sgpr_count 2
  .amdhsa_user_sgpr_kernarg_segment_ptr 1
  .amdhsa_system_sgpr_workgroup_id_x 1
.end_amdhsa_kernel
'''
def make(path, **kw):
    g = Gen(Cfg(**kw))
    lines = g.build()
    txt = HEADER.format(n=NAME) + render(lines) + FOOTER.format(n=NAME)
    open(path, 'w').write(txt)
    return txt

if __name__ == '__main__':
    out = sys.argv[1] if len(sys.argv) > 1 else f'cdna_kernels/{NAME}.s'
    kw = {}
    for a in sys.argv[2:]:
        k, v = a.split('=', 1)
        kw[k] = eval(v)
    t = make(out, **kw)
    print('wrote', out, len(t), 'bytes', t.count('\n'), 'lines')
```

```python
import sys, os
sys.path.insert(0, os.path.dirname(os.path.abspath(__file__)))
from asmir import *

NAME = 'concat_heads__gqa_block_cached__gqa_block_cached__near_ridge'

class Cfg:
    def __init__(s, **kw):
        s.stamps = False
        s.fl_x = ''
        s.fl_wq = 'nt'
        s.fl_k = 'nt'
        s.fl_v = 'nt'
        s.fl_wo = ''
        s.maxA = 4
        s.maxB = 6
        s.poll_at = 16
        s.sig_at = 2
        s.rot_a = True
        s.rot_b = True
        s.swap_r = True
        s.early_b = True
        for k, v in kw.items():
            assert hasattr(s, k), k
            setattr(s, k, v)

SRD_X, SRD_WQ, SRD_K, SRD_V, SRD_WO, SRD_P, SRD_OUT = 4, 8, 12, 16, 20, 24, 28
S_DBG = 32
S_W, S_BR, S_H, S_RG, S_MT, S_NT = 34, 35, 36, 37, 38, 39
S_LW, S_LX = 41, 42
S_SX = 44
S_SW = 51
S_SK = 58
S_COL = 62
S_ROW = 66
S_VB = 70
S_WO = 72
S_T, S_T2, S_T3 = 73, 74, 75
S_PST = 76
S_PLD = 77
S_OST = 81
S_FLAGP, S_FLAGC = 82, 83
S_EXPC = 84
S_VB1 = 85
S_WO1 = 87
S_WOC = 88
S_CNT = 89
S_ST = 90
TA, TB, TC, TD = 0, 1, 3, 43

V_W, V_X, V_R, V_WO = 4, 6, 10, 14
V_TW, V_TX, V_RW, V_RXQ, V_RX = 18, 20, 22, 26, 30
V_L16 = 34
V_EXW0, V_EXR, V_OST, V_EXW1 = 35, 36, 37, 39
V_FW, V_FR0, V_FR1 = 40, 41, 42
V_FLAG = 43
V_T0 = 44
PK = 64
ACC = 128
LDS_X = 98304
A_WF, A_XF, A_KF, A_S = 0, 16, 48, 128
A_VF, A_OF, A_OUT, A_PF = 0, 40, 128, 192

class VM:
    def __init__(s, P): s.P = P; s.n = 0; s.tags = {}; s.done = -1
    def issue(s, tag): s.tags[tag] = s.n; s.n += 1
    def wait(s, tag):
        i = s.tags[tag]
        if i <= s.done: return
        cnt = min(s.n - 1 - i, 63)
        s.done = i
        s.P(f's_waitcnt vmcnt({cnt})')
    def drain(s):
        s.done = s.n - 1
        s.P('s_waitcnt vmcnt(0)')

def vr(a, n=4, k='v'): return f'{k}[{a}:{a+n-1}]'

class Gen:
    def __init__(g, cfg):
        g.cfg = cfg
        g.P = Prog()
        g.vm = VM(g.P)
        g.stamp_n = 0
        g.free = set([('W', i) for i in range(24)] + [('X', j, p) for j in range(4) for p in range(4)])
        g.last_m0 = None
        g.qA = []; g.qB = []

    def stamp(g, reg=None):
        if not g.cfg.stamps: return
        reg = S_ST if reg is None else reg
        k = g.stamp_n; g.stamp_n += 1
        assert k < 11
        g.P(f's_memtime s[{reg}:{reg+1}]')
        g.P('s_waitcnt lgkmcnt(0)')
        g.P(f'v_writelane_b32 v62, s{reg}, {k}')

    def lds_of(g, loc):
        if loc[0] == 'W': return (S_LW, loc[1] * 1024)
        return (S_LX, loc[1] * 16384 + loc[2] * 1024)
    def dma(g, piece):
        P = g.P
        tag, loc, pre, vreg, srd_, soff, fl = piece
        assert loc in g.free, (tag, loc)
        g.free.discard(loc)
        base, off = g.lds_of(loc)
        if g.last_m0 is not None and g.last_m0[0] == base and off - g.last_m0[1] == 1024:
            P('s_addk_i32 m0, 0x400')
        else:
            P(f's_add_u32 m0, s{base}, {off}')
        g.last_m0 = (base, off)
        for x in pre: P(x)
        P(f'buffer_load_dwordx4 v{vreg}, s[{srd_}:{srd_+3}], s{soff} offen {fl} lds'.replace('  ', ' '))
        g.vm.issue(tag)
    def pc_x(g, c, p):   return (('x', c, p), ('X', c % 4, p), [], V_X + p, SRD_X, S_SX + c, g.cfg.fl_x)
    def pc_w(g, j, p):
        c, s = j >> 2, j & 3
        pre = []
        if p == 0:
            pre = [f's_add_u32 s{S_T}, s{S_SW+c}, {s*16*8192}'] if s else [f's_mov_b32 s{S_T}, s{S_SW+c}']
        return (('w', j, p), ('W', 2 * (j % 12) + p), pre, V_W + p, SRD_WQ, S_T, g.cfg.fl_wq)
    def pc_k(g, b, p):   return (('k', b, p), ('W', 8 + 4 * b + p), [], V_R + p, SRD_K, S_SK + b, g.cfg.fl_k)
    G = [('X', 3), ('X', 0), ('X', 1), ('W', 0), ('W', 1), ('X', 2), ('W', 2), ('W', 3), ('W', 4), ('W', 5)]
    def gloc(g, gi, q):
        t = g.G[gi % 10]
        return ('X', t[1], q) if t[0] == 'X' else ('W', 4 * t[1] + q)
    def grp_addr(g, gi):
        t = g.G[gi % 10]
        return (True, t[1] * 16384) if t[0] == 'X' else (False, t[1] * 4096)
    def gi_of(g, ch, item): return 6 * ch + item
    def pc_v(g, ch, b, p):
        r, c = ch >> 2, ch & 3
        vb = (S_VB if r == 0 else S_VB1) + b
        pre = [f's_add_u32 s{S_T2}, s{vb}, s{S_COL+c}'] if p == 0 else []
        return (('v', ch, b, p), g.gloc(g.gi_of(ch, b), p), pre, V_R + p, SRD_V, S_T2, g.cfg.fl_v)
    def pc_o(g, ch, s, q):
        r, c = ch >> 2, ch & 3
        pre = []
        if q == 0:
            if s == 0:
                pre = [f's_add_u32 s{S_WOC}, s{S_WO if r == 0 else S_WO1}, s{S_ROW+c}', f's_mov_b32 s{S_T3}, s{S_WOC}']
            else:
                pre = [f's_add_u32 s{S_T3}, s{S_WOC}, {s*16*896}']
        return (('o', ch, s, q), g.gloc(g.gi_of(ch, 2 + s), q), pre, V_WO + q, SRD_WO, S_T3, g.cfg.fl_wo)
    def pick(g, budget, useB=True):
        if g.qA and g.qA[0][1] in g.free: return g.qA.pop(0)
        if useB and g.qB and g.qB[0][1] in g.free: return g.qB.pop(0)
        return None

    def block(g, mf, readers, pre_read, maxdma, useB=True, extras=None, head=1):
        P = g.P
        extras = list(extras or [])
        readers = list(readers)
        nd = 0
        nm = len(mf)
        did_pre = False
        total = len(readers) + maxdma + len(extras)
        per = max(1, -(-total // max(nm - head + 1, 1)))
        dma_open = True
        def one():
            nonlocal nd, did_pre, dma_open
            if readers:
                if not did_pre:
                    pre_read(); did_pre = True
                P(readers.pop(0)); return True
            return False
        for i, m in enumerate(mf):
            P(m)
            if i + 1 < head: continue
            cnt = 0
            if nd < maxdma:
                pc = g.pick(0, useB)
                if pc: g.dma(pc); nd += 1; cnt += 1
            while cnt < per + 1:
                if one(): cnt += 1; continue
                if extras: P(extras.pop(0)); cnt += 1; continue
                if nd < maxdma:
                    pc = g.pick(0, useB)
                    if pc: g.dma(pc); nd += 1; cnt += 1; continue
                break
        if not did_pre: pre_read(); did_pre = True
        for x in readers: P(x)
        for x in extras: P(x)
        while nd < maxdma:
            pc = g.pick(0, useB)
            if not pc: break
            g.dma(pc); nd += 1

    def prologue(g):
        P, cfg = g.P, g.cfg
        P('s_cmp_ge_u32 s2, 256')
        P('s_cbranch_scc1 L_exit')
        if cfg.stamps:
            P('s_memrealtime s[40:41]') if False else None
            P(f's_memtime s[70:71]')
            P(f's_memrealtime s[72:73]')
        P('s_load_dwordx16 s[76:91], s[0:1], 0')
        P('s_load_dwordx4 s[92:95], s[0:1], 64')
        P('s_load_dwordx4 s[96:99], s[0:1], 80')
        P('s_load_dwordx2 s[100:101], s[0:1], 96')
        P('v_lshrrev_b32 v1, 6, v0')
        P('v_and_b32 v0, 63, v0')
        P(f'v_readfirstlane_b32 s{S_W}, v1')
        P('s_and_b32 s60, s2, 7')
        P('s_lshr_b32 s61, s2, 3')
        P(f's_lshr_b32 s{S_BR}, s60, 2')
        P('s_and_b32 s62, s60, 3')
        P('s_and_b32 s63, s61, 3')
        P(f's_lshl_b32 s{S_H}, s62, 2'); P(f's_add_u32 s{S_H}, s{S_H}, s63')
        P(f's_lshr_b32 s{S_RG}, s61, 2')
        P(f's_mov_b32 s{S_MT}, s{S_H}')
        P(f's_lshr_b32 s{S_NT}, s61, 2')
        P('v_lshrrev_b32 v1, 3, v0')
        P('v_and_b32 v2, 7, v0')
        P('v_bfe_u32 v3, v0, 4, 1')
        P('v_lshlrev_b32 v3, 2, v3')
        P('v_xor_b32 v3, v3, v2')
        P('v_lshlrev_b32 v3, 4, v3')
        P(f'v_lshlrev_b32 v{V_W}, 13, v1'); P(f'v_add_u32 v{V_W}, v{V_W}, v3')
        P(f'v_add_u32 v{V_W+1}, 0x10000, v{V_W}')
        P(f'v_mul_u32_u24 v{V_WO}, 896, v1'); P(f'v_add_u32 v{V_WO}, v{V_WO}, v3')
        P(f'v_add_u32 v{V_WO+1}, {8*896}, v{V_WO}')
        P(f'v_add_u32 v{V_WO+2}, {256*896}, v{V_WO}')
        P(f'v_add_u32 v{V_WO+3}, {264*896}, v{V_WO}')
        P('v_lshrrev_b32 v3, 4, v0')
        P('v_xor_b32 v3, v3, v2')
        P(f'v_lshlrev_b32 v{V_T0}, 4, v3')
        P('v_xor_b32 v3, 4, v3')
        P(f'v_lshlrev_b32 v{V_T0+1}, 4, v3')
        P(f'v_mul_u32_u24 v{V_T0+2}, 896, v1')
        P(f'v_lshlrev_b32 v{V_T0+3}, 9, v1')
        for p in range(4):
            P(f'v_add_u32 v{V_X+p}, v{V_T0+(p&1)}, v{V_T0+2}')
            if p: P(f'v_add_u32 v{V_X+p}, {p*8*896}, v{V_X+p}')
            P(f'v_add_u32 v{V_R+p}, v{V_T0+(p&1)}, v{V_T0+3}')
            if p: P(f'v_add_u32 v{V_R+p}, {p*4096}, v{V_R+p}')
        P(f's_mul_i32 s{S_LW}, s{S_W}, 24576')
        P(f's_lshl_b32 s{S_LX}, s{S_W}, 12'); P(f's_add_u32 s{S_LX}, s{S_LX}, {LDS_X}')
        if cfg.rot_a:
            P('s_lshl_b32 s64, s63, 1'); P(f's_add_u32 s64, s64, s{S_RG}')
            P('s_cmp_ge_u32 s64, 7'); P('s_cselect_b32 s65, 7, 0'); P('s_sub_u32 s64, s64, s65')
        else:
            P('s_mov_b32 s64, 0')
        P(f's_lshl_b32 s65, s{S_RG}, 2'); P(f's_add_u32 s65, s65, s{S_W}')
        P(f's_mul_i32 s66, s65, {32*896}')
        P(f's_lshl_b32 s67, s{S_H}, 9'); P(f's_lshl_b32 s68, s{S_W}, 7'); P('s_add_u32 s67, s67, s68')
        for c in range(7):
            P(f's_lshl_b32 s69, s64, 7'); P(f's_add_u32 s{S_SX+c}, s66, s69')
            P(f's_lshl_b32 s69, s64, 19'); P(f's_add_u32 s{S_SW+c}, s67, s69')
            if c < 6:
                P('s_add_u32 s64, s64, 1'); P('s_cmp_eq_u32 s64, 7'); P('s_cselect_b32 s64, 0, s64')
        P('s_waitcnt lgkmcnt(0)')
        if cfg.stamps:
            P('v_mov_b32 v62, 0'); P('v_writelane_b32 v62, s70, 0'); P('v_writelane_b32 v62, s72, 14'); P('v_writelane_b32 v62, s73, 15')
            g.stamp_n = 1
            g.stamp(70)
        P(f's_cmp_eq_u32 s{S_BR}, 0')
        def srd(base, a, b, size):
            P(f's_cselect_b32 s{base}, s{a}, s{b}')
            P(f's_cselect_b32 s{base+1}, s{a+1}, s{b+1}')
            P(f's_mov_b32 s{base+2}, {size}')
            P(f's_mov_b32 s{base+3}, 0x20000')
        srd(SRD_X, 76, 86, 917504)
        srd(SRD_WQ, 82, 92, 3670016)
        srd(SRD_K, 78, 88, 4194304)
        srd(SRD_V, 80, 90, 4194304)
        srd(SRD_WO, 84, 94, 3670016)
        for b_ in (SRD_X, SRD_WQ, SRD_K, SRD_V, SRD_WO):
            P(f's_and_b32 s{b_+1}, s{b_+1}, 0xffff')
        for c in range(3):
            for p in range(4): g.dma(g.pc_x(c, p))
            for s in range(4):
                for p in range(2): g.dma(g.pc_w(4 * c + s, p))
        for p in range(4): g.dma(g.pc_x(3, p))
        P(f's_mov_b32 s{SRD_OUT}, s96'); P(f's_and_b32 s{SRD_OUT+1}, s97, 0xffff'); P(f's_mov_b32 s{SRD_OUT+2}, 1835008'); P(f's_mov_b32 s{SRD_OUT+3}, 0x20000')
        P(f's_mov_b32 s{SRD_P}, s100'); P(f's_and_b32 s{SRD_P+1}, s101, 0xffff'); P(f's_mov_b32 s{SRD_P+2}, {(8<<20) if cfg.stamps else (2<<20)}'); P(f's_mov_b32 s{SRD_P+3}, 0x20000')
        P(f's_mov_b32 s{S_DBG}, s98'); P(f's_mov_b32 s{S_DBG+1}, s99')
        P(f's_cmp_lt_u32 s{S_NT}, 7')
        P(f's_cselect_b32 s{SRD_V+2}, s{SRD_V+2}, 0')
        P(f's_cselect_b32 s{SRD_WO+2}, s{SRD_WO+2}, 0')
        g.stamp()
        T = V_T0
        P('v_lshrrev_b32 v1, 4, v0'); P('v_lshrrev_b32 v2, 1, v1'); P('v_and_b32 v1, 1, v1')
        P('v_bfe_u32 v3, v0, 2, 2')
        P(f'v_and_b32 v{T}, 3, v0')
        P(f'v_lshlrev_b32 v{T+1}, 1, v1'); P(f'v_and_b32 v{T+2}, 1, v{T}'); P(f'v_add_u32 v{T+1}, v{T+1}, v{T+2}')
        P(f'v_lshrrev_b32 v{T+2}, 1, v3'); P(f'v_lshlrev_b32 v{T+2}, 2, v{T+2}'); P(f'v_xor_b32 v{T+1}, v{T+1}, v{T+2}')
        P(f'v_lshlrev_b32 v{T+1}, 4, v{T+1}')
        P(f'v_lshrrev_b32 v{T+2}, 1, v{T}'); P(f'v_lshlrev_b32 v{T+2}, 3, v{T+2}'); P(f'v_add_u32 v{T+1}, v{T+1}, v{T+2}')
        P(f'v_lshlrev_b32 v{T+2}, 7, v3'); P(f'v_add_u32 v{T+1}, v{T+1}, v{T+2}')
        P(f'v_lshlrev_b32 v{T+2}, 10, v2'); P(f'v_add_u32 v{T+1}, v{T+1}, v{T+2}')
        P(f'v_xor_b32 v{T+2}, 64, v{T+1}')
        for t in range(2):
            P(f'v_add_u32 v{V_TW+t}, s{S_LW}, v{T+1+t}')
            P(f'v_add_u32 v{V_TX+t}, s{S_LX}, v{T+1+t}')
        P('v_and_b32 v1, 31, v0'); P('v_lshrrev_b32 v2, 5, v0'); P('v_bfe_u32 v3, v1, 1, 3'); P('v_xor_b32 v3, v3, v2')
        P('v_lshlrev_b32 v3, 4, v3'); P(f'v_lshlrev_b32 v{T}, 7, v1'); P(f'v_add_u32 v3, v3, v{T}')
        for s in range(4):
            P(f'v_xor_b32 v{T}, {32*s}, v3')
            P(f'v_add_u32 v{V_RW+s}, s{S_LW}, v{T}')
            P(f'v_add_u32 v{V_RXQ+s}, s{S_LX}, v{T}')
            P(f'v_add_u32 v{V_RX+s}, {LDS_X}, v{T}')
        P(f'v_lshlrev_b32 v{V_L16}, 4, v0')
        P(f's_lshl_b32 s{TA}, s{S_W}, 12')
        P(f'v_add_u32 v{V_FR0}, s{TA}, v{V_L16}')
        P(f'v_add_u32 v{V_FR1}, 49152, v{V_FR0}')
        P(f'v_add_u32 v{V_EXW0}, 8192, v{V_FR0}')
        P(f'v_add_u32 v{V_EXW1}, 8192, v{V_FR1}')
        P(f'v_add_u32 v{V_FW}, s{S_LW}, v{V_L16}')
        P(f'v_add_u32 v{V_EXR}, 8192, v{V_FW}')
        P(f'v_mul_u32_u24 v{V_OST}, 1792, v1'); P('v_lshlrev_b32 v2, 4, v2'); P(f'v_add_u32 v{V_OST}, v{V_OST}, v2')
        P(f's_lshr_b32 s{TA}, s{S_H}, 1')
        P(f's_lshl_b32 s{TB}, s{S_RG}, 5'); P(f's_add_u32 s{TA}, s{TA}, s{TB}')
        P(f's_lshl_b32 s{TA}, s{TA}, 14'); P(f's_lshl_b32 s{TB}, s{S_W}, 7'); P(f's_add_u32 s{S_SK}, s{TA}, s{TB}')
        for b in range(1, 4): P(f's_add_u32 s{S_SK+b}, s{S_SK}, {b*8*16384}')
        P(f's_and_b32 s{TA}, s{S_H}, 3')
        P(f's_lshr_b32 s{TB}, s{S_H}, 2')
        if cfg.rot_b:
            P(f's_add_u32 s{TC}, s{TA}, s{S_NT}'); P(f's_and_b32 s{TC}, s{TC}, 3')
        else:
            P(f's_mov_b32 s{TC}, 0')
        for c in range(4):
            P(f's_lshl_b32 s{S_COL+c}, s{TC}, 7'); P(f's_mul_i32 s{S_ROW+c}, s{TC}, {64*896}')
            if c < 3: P(f's_add_u32 s{TC}, s{TC}, 1'); P(f's_and_b32 s{TC}, s{TC}, 3')
        if cfg.swap_r:
            P(f's_lshr_b32 s{TC}, s{TB}, 1')
        else:
            P(f's_mov_b32 s{TC}, 0')
        P(f's_lshl_b32 s{TD}, s{S_W}, 1'); P(f's_add_u32 s{TA}, s{TD}, s{TC}')
        P(f's_xor_b32 s{TC}, s{TC}, 1'); P(f's_add_u32 s{TB}, s{TD}, s{TC}')
        P(f's_lshl_b32 s{TC}, s{S_MT}, 4')
        for r, kv in ((0, TA), (1, TB)):
            vb = S_VB if r == 0 else S_VB1
            P(f's_add_u32 s{TD}, s{TC}, s{kv}'); P(f's_lshl_b32 s{vb}, s{TD}, 14'); P(f's_add_u32 s{vb+1}, s{vb}, {8*16384}')
            wo = S_WO if r == 0 else S_WO1
            P(f's_mul_i32 s{wo}, s{kv}, {512*896}'); P(f's_lshl_b32 s{TD}, s{S_NT}, 7'); P(f's_add_u32 s{wo}, s{wo}, s{TD}')
            P(f's_lshl_b32 s{TD}, s{S_BR}, 5'); P(f's_lshl_b32 s{S_T}, s{S_MT}, 1'); P(f's_add_u32 s{TD}, s{TD}, s{S_T}')
            P(f's_lshl_b32 s{TD}, s{TD}, 4'); P(f's_lshl_b32 s{S_T}, s{kv}, 1'); P(f's_add_u32 s{TD}, s{TD}, s{S_T}')
            P(f's_lshl_b32 s{S_PLD+2*r}, s{TD}, 11'); P(f's_add_u32 s{S_PLD+2*r+1}, s{S_PLD+2*r}, {16*2048}')
        P(f's_lshl_b32 s{TA}, s{S_BR}, 5'); P(f's_lshl_b32 s{TB}, s{S_RG}, 2'); P(f's_add_u32 s{TA}, s{TA}, s{TB}'); P(f's_add_u32 s{TA}, s{TA}, s{S_W}')
        P(f's_lshl_b32 s{TA}, s{TA}, 4'); P(f's_add_u32 s{TA}, s{TA}, s{S_H}'); P(f's_lshl_b32 s{S_PST}, s{TA}, 11')
        P(f's_lshl_b32 s{TA}, s{S_MT}, 1'); P(f's_lshr_b32 s{TB}, s{S_W}, 1'); P(f's_add_u32 s{TA}, s{TA}, s{TB}'); P(f's_mul_i32 s{TA}, s{TA}, {32*1792}')
        P(f's_mul_i32 s{TB}, s{S_BR}, 896'); P(f's_add_u32 s{TA}, s{TA}, s{TB}'); P(f's_lshl_b32 s{TB}, s{S_NT}, 7'); P(f's_add_u32 s{TA}, s{TA}, s{TB}')
        P(f's_and_b32 s{TB}, s{S_W}, 1'); P(f's_lshl_b32 s{TB}, s{TB}, 6'); P(f's_add_u32 s{S_OST}, s{TA}, s{TB}')
        P(f's_lshl_b32 s{TA}, s{S_BR}, 3'); P(f's_add_u32 s{TB}, s{TA}, s{S_RG}'); P(f's_lshl_b32 s{TB}, s{TB}, 2'); P(f's_lshr_b32 s{TC}, s{S_H}, 2')
        P(f's_add_u32 s{TB}, s{TB}, s{TC}'); P(f's_lshl_b32 s{S_FLAGP}, s{TB}, 2')
        P(f's_lshr_b32 s{TB}, s{S_MT}, 1'); P(f's_add_u32 s{TB}, s{TA}, s{TB}'); P(f's_lshl_b32 s{TB}, s{TB}, 2'); P(f's_add_u32 s{TB}, s{TB}, s{S_W}')
        P(f's_lshl_b32 s{S_FLAGC}, s{TB}, 2')
        P(f's_mov_b32 s{S_EXPC}, 0x3db8aa3b')
        qA = []
        for j in range(12, 28):
            if j in (16, 20, 24): qA += [g.pc_x(j // 4, p) for p in range(4)]
            qA += [g.pc_w(j, 0), g.pc_w(j, 1)]
        for b in range(4): qA += [g.pc_k(b, p) for p in range(4)]
        g.qA = qA
        qB = []
        for ch in range(8):
            for b in range(2): qB += [g.pc_v(ch, b, p) for p in range(4)]
            for s in range(4): qB += [g.pc_o(ch, s, q) for q in range(4)]
        g.qB = qB

    def a_reads(g, j):
        c, s = j >> 2, j & 3
        st = j & 1
        out = []
        wo = 2 * (j % 12) * 1024
        for t in range(2):
            d = A_WF + 8 * st + 4 * t
            out.append(f'ds_read_b64_tr_b16 a[{d}:{d+1}], v{V_TW+t} offset:{wo}')
            out.append(f'ds_read_b64_tr_b16 a[{d+2}:{d+3}], v{V_TW+t} offset:{wo+512}')
        xr = []
        for b in range(4):
            d = A_XF + 16 * st + 4 * b
            xr.append(f'ds_read_b128 a[{d}:{d+3}], v{V_RX+s} offset:{(c % 4) * 16384 + b * 4096}')
        return out[0:2] + xr[0:2] + out[2:4] + xr[2:4]
    def a_mfmas(g, j):
        st = j & 1
        out = []
        for t in range(2):
            for b in range(4):
                acc = ACC + 16 * (4 * t + b)
                C = '0' if j == 0 else vr(acc, 16)
                out.append(f'v_mfma_f32_32x32x16_bf16 {vr(acc,16)}, {vr(A_WF+8*st+4*t,4,"a")}, {vr(A_XF+16*st+4*b,4,"a")}, {C}')
        return out
    def phaseA(g):
        P, cfg, vm = g.P, g.cfg, g.vm
        vm.wait(('w', 0, 1))
        P('s_barrier')
        g.stamp()
        for x in g.a_reads(0): P(x)
        for j in range(28):
            c, s = j >> 2, j & 3
            P('s_waitcnt lgkmcnt(0)')
            g.free.add(('W', 2 * (j % 12))); g.free.add(('W', 2 * (j % 12) + 1))
            nxt = j + 1
            def pre():
                if nxt < 28:
                    if nxt & 3 == 0:
                        vm.wait(('x', nxt >> 2, 3))
                        vm.wait(('w', nxt, 1))
                        P('s_barrier')
                        for p in range(4): g.free.add(('X', c % 4, p))
                    else:
                        vm.wait(('w', nxt, 1))
            readers = g.a_reads(nxt) if nxt < 28 else []
            g.block(g.a_mfmas(j), readers, pre, cfg.maxA, useB=cfg.early_b, head=(2 if (nxt < 28 and nxt & 3 == 0) else 1))
        assert not g.qA, g.qA

    def phaseS(g):
        P, cfg, vm = g.P, g.cfg, g.vm
        g.stamp()
        vm.wait(('k', 3, 3))
        kr = []
        for b in range(4):
            for u in range(4):
                d = A_KF + 16 * b + 4 * u
                kr.append(f'ds_read_b128 a[{d}:{d+3}], v{V_RW+u} offset:{(8 + 4*b) * 1024}')
        cv = []
        order = [(t, b) for b in range(4) for t in range(2)]
        for (t, b) in [(0,0),(0,1),(0,2),(0,3),(1,0),(1,1),(1,2),(1,3)]:
            for i in range(8):
                acc = ACC + 16 * (4 * t + b)
                cv.append(f'v_cvt_pk_bf16_f32 v{PK + 8*(4*t+b) + i}, v{acc+2*i}, v{acc+2*i+1}')
        for i in range(16):
            P(kr[i])
        for x in cv[:32]: P(x)
        P('s_waitcnt lgkmcnt(0)')
        P('s_barrier')
        for p in range(4): g.free.add(('X', 2, p))
        mf0, mf1 = [], []
        for b in range(4):
            for u in range(2):
                acc = A_S + 16 * b
                C = '0' if u == 0 else vr(acc, 16, 'a')
                mf0.append(f'v_mfma_f32_32x32x16_bf16 {vr(acc,16,"a")}, {vr(A_KF+16*b+4*u,4,"a")}, {vr(PK+8*b+4*u,4)}, {C}')
                mf1.append(f'v_mfma_f32_32x32x16_bf16 {vr(acc,16,"a")}, {vr(A_KF+16*b+4*(2+u),4,"a")}, {vr(PK+8*(4+b)+4*u,4)}, {vr(acc,16,"a")}')
        g.block(mf0, [], lambda: None, 4, useB=True, extras=cv[32:])
        g.block(mf1, [], lambda: None, 4, useB=True)
        for b in range(4):
            for q in range(4):
                base = V_EXW0 if b < 2 else V_EXW1
                P(f'ds_write_b128 v{base}, {vr(A_S+16*b+4*q,4,"a")} offset:{(b&1)*24576 + q*1024}')
        P('s_waitcnt lgkmcnt(0)')
        P('s_barrier')
        for src in range(4):
            for q in range(4):
                P(f'ds_read_b128 {vr(ACC+16*src+4*q,4)}, v{V_EXR} offset:{src*4096 + q*1024}')
        P('s_waitcnt lgkmcnt(0)')
        for i in range(8, 24): g.free.add(('W', i))
        sm = []
        S = ACC
        for r in range(16): sm.append(f'v_add_f32 v{S+r}, v{S+r}, v{S+16+r}')
        for r in range(16): sm.append(f'v_add_f32 v{S+32+r}, v{S+32+r}, v{S+48+r}')
        for r in range(16): sm.append(f'v_add_f32 v{S+r}, v{S+r}, v{S+32+r}')
        T = V_T0
        sm.append(f'v_max3_f32 v{T}, v{S}, v{S+1}, v{S+2}')
        for r in range(3, 15, 2): sm.append(f'v_max3_f32 v{T}, v{T}, v{S+r}, v{S+r+1}')
        sm.append(f'v_max_f32 v{T}, v{T}, v{S+15}')
        sm.append(f'v_mov_b32 v{T+1}, v{T}')
        sm.append(f'v_permlane32_swap_b32 v{T}, v{T+1}')
        sm.append(f'v_max_f32 v{T}, v{T}, v{T+1}')
        sm.append(f'v_mul_f32 v{T}, s{S_EXPC}, v{T}')
        for r in range(16): sm.append(f'v_fma_f32 v{S+r}, v{S+r}, s{S_EXPC}, -v{T}')
        for r in range(16): sm.append(f'v_exp_f32 v{S+r}, v{S+r}')
        for r in range(8): sm.append(f'v_add_f32 v{S+16+r}, v{S+2*r}, v{S+2*r+1}')
        for r in range(4): sm.append(f'v_add_f32 v{S+16+r}, v{S+16+2*r}, v{S+16+2*r+1}')
        for r in range(2): sm.append(f'v_add_f32 v{S+16+r}, v{S+16+2*r}, v{S+16+2*r+1}')
        sm.append(f'v_add_f32 v{T}, v{S+16}, v{S+17}')
        sm.append(f'v_mov_b32 v{T+1}, v{T}')
        sm.append(f'v_permlane32_swap_b32 v{T}, v{T+1}')
        sm.append(f'v_add_f32 v{T}, v{T}, v{T+1}')
        sm.append(f'v_rcp_f32 v{T}, v{T}')
        for r in range(16): sm.append(f'v_mul_f32 v{S+r}, v{S+r}, v{T}')
        for i in range(8): sm.append(f'v_cvt_pk_bf16_f32 v{T+4+i}, v{S+2*i}, v{S+2*i+1}')
        k = 0
        for x in sm:
            P(x); k += 1
            if k % 6 == 0:
                pc = g.pick(0, True)
                if pc: g.dma(pc)
        for u in range(2):
            P(f'buffer_store_dwordx4 {vr(T+4+4*u,4)}, v{V_L16}, s[{SRD_P}:{SRD_P+3}], s{S_PST} offen offset:{u*1024} sc1')
            vm.issue(('pst', u))
        g.stamp()
        P(f's_cmp_lt_u32 s{S_NT}, 7')
        P('s_cbranch_scc1 L_hasB')
        P('s_waitcnt vmcnt(0)')
        P('s_barrier')
        g.signal('a')
        g.finish_stamps('a')
        P('s_endpgm')
        P.lab('L_hasB')

    def signal(g, tag):
        P = g.P
        P(f's_cmp_eq_u32 s{S_W}, 0')
        P(f's_cbranch_scc0 L_sig_{tag}')
        P(f'v_mov_b32 v{V_T0+12}, s{S_FLAGP}')
        P(f'v_mov_b32 v{V_T0+13}, 1')
        P(f'v_cmp_eq_u32 vcc, 0, v0')
        P(f's_and_saveexec_b64 s[{S_T}:{S_T+1}], vcc') if False else None
        P('s_mov_b64 exec, 1')
        P(f'global_atomic_add v{V_T0+12}, v{V_T0+13}, s[{S_DBG}:{S_DBG+1}]')
        P('s_mov_b64 exec, -1')
        P.lab(f'L_sig_{tag}')

    def b_steps(g): return [(ch, s) for ch in range(8) for s in range(4)]
    def vset(g, ch, s): return A_VF + ((4 * ch + s) % 5) * 8
    def b_reads_V(g, ch):
        out = []
        for s in range(4):
            for b in range(2):
                isx, off = g.grp_addr(g.gi_of(ch, b))
                d = g.vset(ch, s) + 4 * b
                out.append(f'ds_read_b128 a[{d}:{d+3}], v{(V_RXQ if isx else V_RW)+s} offset:{off}')
        return out
    def b_reads_O(g, k):
        ch, s = k >> 2, k & 3
        isx, off = g.grp_addr(g.gi_of(ch, 2 + s))
        out = []
        for hh in range(2):
            for t in range(2):
                d = A_OF + 16 * (k & 1) + 8 * hh + 4 * t
                a = (V_TX if isx else V_TW) + t
                out.append(f'ds_read_b64_tr_b16 a[{d}:{d+1}], v{a} offset:{off + hh*2048}')
                out.append(f'ds_read_b64_tr_b16 a[{d+2}:{d+3}], v{a} offset:{off + hh*2048 + 512}')
        return out
    def b_mfmas(g, k):
        ch, s = k >> 2, k & 3
        first = (k % 16 == 0)
        out = []
        for hh in range(2):
            for t in range(2):
                for b in range(2):
                    acc = ACC + 16 * (4 * hh + 2 * t + b)
                    C = '0' if first else vr(acc, 16)
                    out.append(f'v_mfma_f32_32x32x16_bf16 {vr(acc,16)}, {vr(g.vset(ch,s)+4*b,4,"a")}, {vr(A_OF+16*(k&1)+8*hh+4*t,4,"a")}, {C}')
        return out
    def cvt_tile(g, tile):
        acc = ACC + 16 * tile
        return [f'v_cvt_pk_bf16_f32 v{PK+8*tile+i}, v{acc+2*i}, v{acc+2*i+1}' for i in range(8)]
    def c_mfmas(g, r):
        out = []
        for hh in range(2):
            for u in range(2):
                for nn in range(2):
                    for b in range(2):
                        tile = 4 * hh + 2 * nn + b
                        acc = A_OUT + 16 * (2 * b + nn)
                        C = '0' if (r == 0 and hh == 0 and u == 0) else vr(acc, 16, 'a')
                        out.append(f'v_mfma_f32_32x32x16_bf16 {vr(acc,16,"a")}, {vr(PK+8*tile+4*u,4)}, {vr(A_PF+32*r+16*hh+8*b+4*u,4,"a")}, {C}')
        return out
    def p_loads(g, r):
        out = []
        for hh in range(2):
            for b in range(2):
                for u in range(2):
                    d = A_PF + 32 * r + 16 * hh + 8 * b + 4 * u
                    out.append((('pld', r, hh, b, u), f'buffer_load_dwordx4 a[{d}:{d+3}], v{V_L16}, s[{SRD_P}:{SRD_P+3}], s{S_PLD+2*r+b} offen offset:{hh*2048+u*1024} sc1'))
        return out

    def phaseB(g):
        P, cfg, vm = g.P, g.cfg, g.vm
        while ('o', 0, 0, 3) not in vm.tags:
            pc = g.pick(0, True); assert pc; g.dma(pc)
        vm.wait(('o', 0, 0, 3))
        for x in g.b_reads_V(0) + g.b_reads_O(0): P(x)
        pl = []
        cm0 = []
        for k in range(32):
            ch, s = k >> 2, k & 3
            P('s_waitcnt lgkmcnt(0)')
            for q in range(4): g.free.add(g.gloc(g.gi_of(ch, 2 + s), q))
            if s == 0:
                for b in range(2):
                    for q in range(4): g.free.add(g.gloc(g.gi_of(ch, b), q))
            nxt = k + 1
            readers = []
            if nxt < 32:
                ch2, s2 = nxt >> 2, nxt & 3
                readers = (g.b_reads_O(nxt) if s2 else g.b_reads_V(ch2)[:2] + g.b_reads_O(nxt) + g.b_reads_V(ch2)[2:])
            def pre():
                if nxt < 32:
                    while ('o', nxt >> 2, nxt & 3, 3) not in vm.tags:
                        pc = g.pick(0, True); assert pc, (k, g.qB[0]); g.dma(pc)
                    vm.wait(('o', nxt >> 2, nxt & 3, 3))
            mf = g.b_mfmas(k)
            extras = []
            if k == cfg.sig_at:
                vm.wait(('pst', 1))
                P('s_barrier')
                g.signal('b')
            if k == 16:
                mf2 = []
                for i, m in enumerate(mf):
                    tile = i
                    mf2.append((g.cvt_tile(tile), m))
                did = False
                for i, (cv, m) in enumerate(mf2):
                    for x in cv: P(x)
                    P(m)
                    if i == 0:
                        pre()
                        rd = list(readers)
                    for _ in range(2):
                        if rd: P(rd.pop(0))
                    pc = g.pick(0, True)
                    if pc: g.dma(pc)
                for x in rd: P(x)
            else:
                if k == cfg.poll_at + 1:
                    P(f'v_mov_b32 v{V_FLAG+0}, v{V_FLAG}') if False else None
                if cm0 and k >= cfg.poll_at + 8:
                    take, cm0 = cm0[:4], cm0[4:]
                    mf = [x for pair in zip(mf[0::2], take) for x in pair] + [] if False else mf
                    mfx = []
                    for i, m in enumerate(mf):
                        mfx.append(m)
                        if i % 2 == 1 and take: mfx.append(take.pop(0))
                    mf = mfx
                g.block(mf, readers, pre, cfg.maxB, useB=True, extras=extras)
            if k == cfg.poll_at:
                P(f'v_mov_b32 v{V_T0}, s{S_FLAGC}')
                P(f'global_load_dword v{V_FLAG}, v{V_T0}, s[{S_DBG}:{S_DBG+1}] sc1')
                vm.issue('poll')
            if k == cfg.poll_at + 2:
                vm.wait('poll')
                P(f'v_readfirstlane_b32 s{S_CNT}, v{V_FLAG}')
                P(f's_cmp_ge_u32 s{S_CNT}, 4')
                P('s_cbranch_scc1 L_pready')
                P(f's_mov_b32 s{S_T}, 0')
                P.lab('L_spin')
                P('s_sleep 4')
                P(f'global_load_dword v{V_FLAG}, v{V_T0}, s[{S_DBG}:{S_DBG+1}] sc1')
                P('s_waitcnt vmcnt(0)')
                P(f'v_readfirstlane_b32 s{S_CNT}, v{V_FLAG}')
                P(f's_add_u32 s{S_T}, s{S_T}, 1')
                P(f's_cmp_ge_u32 s{S_T}, 0x8000')
                P('s_cbranch_scc1 L_pready')
                P(f's_cmp_ge_u32 s{S_CNT}, 4')
                P('s_cbranch_scc0 L_spin')
                P.lab('L_pready')
                g.last_m0 = None
                for tag, x in g.p_loads(0) + g.p_loads(1):
                    P(x); vm.issue(tag)
            if k == cfg.poll_at + 7:
                vm.wait(('pld', 1, 1, 1, 1))
                cm0 = g.c_mfmas(0)
        assert not g.qB and not cm0, (len(g.qB), len(cm0))
        g.stamp()
        cm = g.c_mfmas(1)
        for hh in range(2):
            for tile in range(4 * hh, 4 * hh + 4):
                for x in g.cvt_tile(tile): P(x)
            for m in cm[8 * hh: 8 * hh + 8]: P(m)
        for tt in range(4):
            for q in range(4):
                P(f'ds_write_b128 v{V_FW}, {vr(A_OUT+16*tt+4*q,4,"a")} offset:{tt*4096 + q*1024}')
        P('s_waitcnt lgkmcnt(0)')
        P('s_barrier')
        for src in range(4):
            for q in range(4):
                base = V_FR0 if src < 2 else V_FR1
                P(f'ds_read_b128 {vr(ACC+16*src+4*q,4)}, v{base} offset:{(src&1)*24576 + q*1024}')
        P('s_waitcnt lgkmcnt(0)')
        S = ACC
        for r in range(16): P(f'v_add_f32 v{S+r}, v{S+r}, v{S+16+r}')
        for r in range(16): P(f'v_add_f32 v{S+32+r}, v{S+32+r}, v{S+48+r}')
        for r in range(16): P(f'v_add_f32 v{S+r}, v{S+r}, v{S+32+r}')
        for i in range(8): P(f'v_cvt_pk_bf16_f32 v{V_T0+i}, v{S+2*i}, v{S+2*i+1}')
        for u in range(2):
            P(f'buffer_store_dwordx4 {vr(V_T0+4*u,4)}, v{V_OST}, s[{SRD_OUT}:{SRD_OUT+3}], s{S_OST} offen offset:{u*32}')
        g.finish_stamps('b')
        P('s_endpgm')

    def finish_stamps(g, tag):
        P = g.P
        if not g.cfg.stamps: return
        P('s_waitcnt vmcnt(0)')
        P(f's_memrealtime s[{S_T2}:{S_T2+1}]')
        P(f's_memtime s[{S_ST}:{S_ST+1}]')
        P('s_waitcnt lgkmcnt(0)')
        P(f'v_writelane_b32 v62, s{S_ST}, 11')
        P(f'v_writelane_b32 v62, s{S_T2}, 12')
        P(f'v_writelane_b32 v62, s{S_T2+1}, 13')
        P(f's_cmp_eq_u32 s{S_W}, 0')
        P(f's_cbranch_scc0 L_st_{tag}')
        P(f's_lshl_b32 s{S_T}, s2, 6'); P(f's_add_u32 s{S_T}, s{S_T}, {4<<20}')
        P(f'v_lshlrev_b32 v61, 2, v0')
        P('s_mov_b64 exec, 0xffff')
        P(f'buffer_store_dword v62, v61, s[{SRD_P}:{SRD_P+3}], s{S_T} offen')
        P('s_mov_b64 exec, -1')
        P.lab(f'L_st_{tag}')

    def build(g):
        g.prologue()
        g.phaseA()
        g.phaseS()
        g.phaseB()
        g.P.lab('L_exit')
        g.P('s_endpgm')
        return hazard_pass([x for x in g.P.l if x is not None])

HEADER = '''; Fused two-branch GQA block: Q-projection + scores + softmax (phase A, publishes P), V*Wo (phase B), P*(V*Wo) (phase C).
; @launch grid=(256,1,1) block=(256,1,1) lds=163840
.amdgcn_target "amdgcn-amd-amdhsa--gfx950"
.text
.globl {n}_kernel
.p2align 8
.type {n}_kernel,@function
{n}_kernel:
'''
FOOTER = '''.section .rodata,"a"
.p2align 6
.amdhsa_kernel {n}_kernel
  .amdhsa_next_free_vgpr 512
  .amdhsa_next_free_sgpr 102
  .amdhsa_accum_offset 256
  .amdhsa_group_segment_fixed_size 0
  .amdhsa_kernarg_size 104
  .amdhsa_user_sgpr_count 2
  .amdhsa_user_sgpr_kernarg_segment_ptr 1
  .amdhsa_system_sgpr_workgroup_id_x 1
.end_amdhsa_kernel
'''
def make(path, **kw):
    g = Gen(Cfg(**kw))
    lines = g.build()
    txt = HEADER.format(n=NAME) + render(lines) + FOOTER.format(n=NAME)
    open(path, 'w').write(txt)
    return txt

if __name__ == '__main__':
    out = sys.argv[1] if len(sys.argv) > 1 else f'cdna_kernels/{NAME}.s'
    kw = {}
    for a in sys.argv[2:]:
        k, v = a.split('=', 1)
        kw[k] = eval(v)
    t = make(out, **kw)
    print('wrote', out, len(t), 'bytes', t.count('\n'), 'lines')
```
